```python
import torch

def _softmax(x, axis=-1):
    return torch.softmax(x, dim=axis)

def _gelu(x):
    return torch.nn.functional.gelu(x, approximate='tanh')

def _silu(x):
    return torch.nn.functional.silu(x)

def _sigmoid(x):
    return torch.sigmoid(x)

def _layernorm(x, axis=-1, eps=1e-05):
    m = x.mean(dim=axis, keepdim=True)
    v = x.var(dim=axis, keepdim=True, unbiased=False)
    return (x - m) / torch.sqrt(v + eps)

def _scatter_add(tgt, idx, src, axis=0):
    return tgt.clone().index_add_(axis, idx, src)

def _segment_sum(src, seg, n):
    out = torch.zeros((n,) + src.shape[1:], dtype=src.dtype)
    return out.index_add_(0, seg, src)

def _pad(x, pw):
    flat = tuple((v for pair in reversed(pw) for v in pair))
    return torch.nn.functional.pad(x, flat)
kernel_name = 'adaLN_cond__linear_kernel_hedgehog__glu_gated_swiglu__prompt'

def setup_inputs():

    _w = lambda a: (lambda t: t.to(torch.bfloat16) if t.is_floating_point() else t)(torch.as_tensor(a))

    def _A_setup():
        B, S, D, H = (1, 2048, 640, 32)
        Dh = D // H
        return {'x': _w((lambda *s: torch.randn(*s, dtype=torch.bfloat16) * 0.05)(B, S, D)), 'wqkv': _w((lambda *s: torch.randn(*s, dtype=torch.bfloat16) * 0.4)(D, 3 * D)), 'w_phi': _w((lambda *s: torch.randn(*s, dtype=torch.bfloat16) * 0.4)(H, Dh, Dh) * Dh ** (-0.5)), 'wo': _w((lambda *s: torch.randn(*s, dtype=torch.bfloat16) * 0.05)(D, D))}
    _A_in = _A_setup()

    def _B_setup():
        B, S, D, F = (1, 2048, 640, 1728)
        return {'x': _w((lambda *s: torch.randn(*s, dtype=torch.bfloat16) * 0.05)(B, S, D)), 'w1': _w((lambda *s: torch.randn(*s, dtype=torch.bfloat16) * 0.8)(D, F) * (2.0 / D) ** 0.5), 'w3': _w((lambda *s: torch.randn(*s, dtype=torch.bfloat16) * 0.8)(D, F) * (2.0 / D) ** 0.5), 'w2': _w((lambda *s: torch.randn(*s, dtype=torch.bfloat16) * 0.8)(F, D) * (2.0 / F) ** 0.5)}
    _B_in = _B_setup()
    return {'A_x': _A_in['x'], 'A_wqkv': _A_in['wqkv'], 'A_w_phi': _A_in['w_phi'], 'A_wo': _A_in['wo'], 'B_x': _B_in['x'], 'B_w1': _B_in['w1'], 'B_w3': _B_in['w3'], 'B_w2': _B_in['w2'], 'c': _w((lambda *s: torch.randn(*s, dtype=torch.bfloat16) * 0.2)(1, 640) * 8.0), 'w_mod': _w((lambda *s: torch.randn(*s, dtype=torch.bfloat16) * 0.2)(640, 6 * 640) * 640 ** (-0.5) * 8.0)}

def reference(A_x, A_wqkv, A_w_phi, A_wo, B_x, B_w1, B_w3, B_w2, c, w_mod):

    def _A_ref(x, wqkv, w_phi, wo):
        B, S, D = x.shape
        H = 32
        Dh = D // H
        qkv = (lambda x, *d: x.permute(*d))((x @ wqkv).reshape(B, S, 3, H, Dh), 2, 0, 3, 1, 4)
        q, k, v = (qkv[0], qkv[1], qkv[2])
        pq = torch.einsum('bhsd,hdf->bhsf', q, w_phi)
        pk = torch.einsum('bhsd,hdf->bhsf', k, w_phi)
        phi_q = torch.concatenate([_softmax(pq, axis=-1), _softmax(-pq, axis=-1)], axis=-1)
        phi_k = torch.concatenate([_softmax(pk, axis=-1), _softmax(-pk, axis=-1)], axis=-1)
        kv = torch.einsum('bhsf,bhsd->bhfd', phi_k, v)
        z = torch.einsum('bhsf->bhf', phi_k)
        num = torch.einsum('bhqf,bhfd->bhqd', phi_q, kv)
        den = torch.einsum('bhqf,bhf->bhq', phi_q, z)[..., None] + 1e-06
        o = num / den
        return (lambda x, *d: x.permute(*d))(o, 0, 2, 1, 3).reshape(B, S, D) @ wo

    def _B_ref(x, w1, w3, w2):
        gate = torch.einsum('bsd,df->bsf', x, w1)
        up = torch.einsum('bsd,df->bsf', x, w3)
        h = _silu(gate) * up
        out = torch.einsum('bsf,fd->bsd', h, w2)
        return out
    x = A_x
    mod = (_silu(c) @ w_mod).reshape(c.shape[0], 6, 1, -1)
    sa, ca, ga, sb, cb, gb = (mod[:, 0].clone(), mod[:, 1].clone(), mod[:, 2].clone(), mod[:, 3].clone(), mod[:, 4].clone(), mod[:, 5].clone())
    h = _layernorm(x, axis=-1) * (1 + ca) + sa
    x = x + ga * _A_ref(h, A_wqkv, A_w_phi, A_wo)
    h = _layernorm(x, axis=-1) * (1 + cb) + sb
    x = x + gb * _B_ref(h, B_w1, B_w3, B_w2)
    return x
```

```python
import re

REG_RE = re.compile(r'^(-|abs\()?([vas])(\d+|\[(\d+):(\d+)\])\)?$')

TRANS = ('v_exp_f32', 'v_log_f32', 'v_rcp_f32', 'v_rsq_f32', 'v_sqrt_f32', 'v_sin_f32', 'v_cos_f32')
MFMA_PASSES = {
    'v_mfma_f32_32x32x16_bf16': 8,
    'v_mfma_f32_16x16x32_bf16': 4,
    'v_mfma_f32_16x16x16_bf16': 4,
    'v_mfma_f32_32x32x8_bf16': 8,
    'v_mfma_f32_4x4x4_16b_bf16': 2,
}
IDX = {2: 0, 4: 1, 8: 2, 16: 3}
D_TO_C_EXACT = (2, 0, 0, 0)
D_TO_C_OVERLAP = (4, 6, 10, 18)
D_TO_AB = (5, 8, 12, 20)
D_TO_VALU = (5, 8, 12, 20)
C_WAR = (1, 3, 7, 15)


def regs_of(tok):
    tok = tok.strip()
    if tok in ('vcc', 'exec', 'm0', 'scc'):
        return {(tok, 0)}
    if tok in ('vcc_lo', 'vcc_hi'):
        return {('vcc', 0)}
    if tok in ('exec_lo', 'exec_hi'):
        return {('exec', 0)}
    m = REG_RE.match(tok)
    if not m:
        return set()
    kind = m.group(2)
    if m.group(4) is not None:
        return {(kind, i) for i in range(int(m.group(4)), int(m.group(5)) + 1)}
    return {(kind, int(m.group(3)))}


def split_ops(rest):
    ops, depth, cur = [], 0, ''
    for ch in rest:
        if ch in '[(':
            depth += 1
        elif ch in '])':
            depth -= 1
        if ch == ',' and depth == 0:
            ops.append(cur.strip())
            cur = ''
        else:
            cur += ch
    if cur.strip():
        ops.append(cur.strip())
    mods = ''
    if ops:
        parts = ops[-1].split(None, 1)
        if len(parts) == 2:
            ops[-1], mods = parts[0], parts[1]
    return ops, mods


class Ins:
    def __init__(self, text):
        self.text = text
        body = text.split(';')[0].strip()
        self.label = body[:-1] if body.endswith(':') else None
        self.raw = body.startswith('.') and self.label is None
        self.op = ''
        self.w = set()
        self.r = set()
        self.states = 0
        self.cls = 'none'
        self.target = None
        self.uncond = False
        if self.label is not None or self.raw or not body:
            return
        sp = body.split(None, 1)
        op = sp[0]
        base = re.sub(r'_(e32|e64|dpp|sdwa)$', '', op)
        self.op = base
        ops, mods = split_ops(sp[1]) if len(sp) > 1 else ([], '')
        self.ops, self.mods = ops, mods
        self.states = 1
        R = [regs_of(o) for o in ops]
        self.dpp = op.endswith('_dpp') or 'row_' in mods or 'quad_perm' in mods
        self.opsel = op.endswith('_sdwa') or ('op_sel:' in mods and not base.startswith('v_pk_'))
        if base == 's_nop':
            self.states = int(ops[0], 0) + 1
            self.cls = 'nop'
        elif base.startswith('v_mfma'):
            self.cls = 'mfma'
            self.passes = MFMA_PASSES[base]
            self.w = R[0]
            self.ra = R[1] | R[2]
            self.rc = R[3]
            self.r = self.ra | self.rc
        elif base.startswith('v_'):
            self.cls = 'valu'
            if base.startswith('v_cmp'):
                self.w = R[0]
                self.r = set().union(*R[1:])
            elif base in ('v_permlane16_swap_b32', 'v_permlane32_swap_b32', 'v_swap_b32'):
                self.w = R[0] | R[1]
                self.r = R[0] | R[1]
            elif base in ('v_add_co_u32', 'v_sub_co_u32', 'v_addc_co_u32', 'v_subb_co_u32'):
                self.w = R[0] | R[1]
                self.r = set().union(*R[2:])
            elif base in ('v_fmac_f32', 'v_dot2c_f32_bf16', 'v_writelane_b32'):
                self.w = R[0]
                self.r = set().union(*R)
            elif base == 'v_nop':
                pass
            else:
                self.w = R[0]
                self.r = set().union(*R[1:]) if len(R) > 1 else set()
                if self.dpp or self.opsel:
                    self.r |= R[0]
        elif base.startswith('buffer_') or base.startswith('global_'):
            self.cls = 'vmem'
            allr = set().union(*R) if R else set()
            self.lds = ' lds' in (' ' + mods) or 'load_lds' in base
            self.wide_store = False
            if 'store' in base or 'atomic' in base:
                self.r = allr
                data = R[0] if base.startswith('buffer_') else R[1]
                self.data = data
                self.wide_store = len(data) >= 3
            elif self.lds:
                self.r = allr | {('m0', 0)}
            elif base in ('buffer_inv', 'buffer_wbl2'):
                pass
            else:
                self.w = R[0]
                self.r = set().union(*R[1:])
                if 'd16' in base:
                    self.r |= R[0]
        elif base.startswith('ds_'):
            self.cls = 'ds'
            if base.startswith('ds_read') or 'permute' in base or 'swizzle' in base:
                self.w = R[0]
                self.r = set().union(*R[1:])
            else:
                self.r = set().union(*R)
        elif base.startswith('s_load') or base.startswith('s_buffer_load') or base in ('s_memtime', 's_memrealtime'):
            self.cls = 'smem'
            self.w = R[0]
            self.r = set().union(*R[1:]) if len(R) > 1 else set()
        elif base.startswith('s_cbranch') or base == 's_branch':
            self.cls = 'branch'
            self.target = ops[0]
            self.uncond = base == 's_branch'
        elif base in ('s_waitcnt', 's_barrier', 's_endpgm', 's_sleep', 's_setprio'):
            self.cls = 'sync'
            self.uncond = base == 's_endpgm'
        elif base.startswith('s_'):
            self.cls = 'salu'
            if base.startswith('s_cmp') or base.startswith('s_bitcmp'):
                self.r = set().union(*R)
            else:
                self.w = set(R[0])
                self.r = set().union(*R[1:]) if len(R) > 1 else set()
                if 'saveexec' in base:
                    self.w |= {('exec', 0)}
        else:
            raise ValueError('unknown instruction class: ' + text)


def is_sreg(x):
    return x[0] in ('s', 'vcc')


def need(p, c):
    n = 0
    if p.cls == 'valu':
        vw = {x for x in p.w if x[0] in 'va' and len(x[0]) == 1}
        sw = {x for x in p.w if is_sreg(x)}
        if c.cls == 'mfma' and vw & c.r:
            n = max(n, 2)
        if c.cls == 'vmem' and sw & c.r:
            n = max(n, 5)
        if c.cls == 'valu':
            if sw & c.r:
                n = max(n, 4 if c.op in ('v_readlane_b32', 'v_writelane_b32') else 2)
            if vw & c.r:
                if c.op in ('v_readlane_b32', 'v_readfirstlane_b32'):
                    n = max(n, 1)
                if c.dpp or c.op.startswith('v_permlane'):
                    n = max(n, 2)
                if p.op in TRANS and c.op not in TRANS:
                    n = max(n, 1)
            if p.opsel and vw & (c.r | c.w):
                n = max(n, 1)
            if p.op.startswith('v_dot') and vw & (c.r | c.w):
                same_c = c.op == p.op and not (vw & set().union(*[regs_of(o) for o in c.ops[1:3]]))
                if not same_c:
                    n = max(n, 3)
        if p.op.startswith('v_dot') and c.cls in ('vmem', 'ds', 'mfma') and vw & c.r:
            n = max(n, 3)
        if p.op in TRANS and c.cls in ('vmem', 'ds', 'mfma') and vw & c.r:
            n = max(n, 2)
        if c.cls in ('salu', 'branch', 'smem') and sw & c.r:
            n = max(n, 1)
        if ('exec', 0) in p.w:
            n = max(n, 5)
    elif p.cls == 'mfma':
        i = IDX[p.passes]
        if c.cls == 'mfma':
            if p.w & c.ra:
                n = max(n, D_TO_AB[i])
            if p.w & c.rc:
                if p.w == c.rc and p.passes == c.passes and p.op == c.op:
                    n = max(n, D_TO_C_EXACT[i])
                else:
                    n = max(n, D_TO_C_OVERLAP[i])
            elif p.w & c.w:
                n = max(n, D_TO_C_OVERLAP[i])
        elif c.cls in ('valu', 'vmem', 'ds'):
            if p.w & (c.r | c.w):
                n = max(n, D_TO_VALU[i])
            if p.rc & c.w:
                n = max(n, C_WAR[i])
    elif p.cls == 'salu':
        if ('m0', 0) in p.w and c.cls == 'vmem' and c.lds:
            n = max(n, 1)
    elif p.cls == 'vmem':
        if p.wide_store and p.data & c.w:
            n = max(n, 2 if c.cls in ('valu', 'mfma') else 1)
    return n


HORIZON = 22


def pad_hazards(ins):
    out = []
    hists = [[]]
    pending = {}
    seen = set()
    nops = 0
    for i in ins:
        if i.label is not None:
            seen.add(i.label)
            hists = hists + pending.pop(i.label, [])
            if not hists:
                hists = [[]]
            out.append(i)
            continue
        if i.cls == 'none':
            out.append(i)
            continue
        if not hists:
            hists = [[]]
        req = 0
        for h in hists:
            for (p, age) in h:
                req = max(req, need(p, i) - age)
        while req > 0:
            k = min(req, 16)
            nop = Ins('s_nop %d' % (k - 1))
            out.append(nop)
            nops += 1
            hists = [[(p, a + k) for (p, a) in h if a + k < HORIZON] for h in hists]
            req -= k
        out.append(i)
        hists = [[(p, a + i.states) for (p, a) in h if a + i.states < HORIZON] for h in hists]
        if i.cls in ('valu', 'mfma', 'salu', 'vmem'):
            for h in hists:
                h.append((i, 0))
        uniq = []
        for h in hists:
            if h not in uniq:
                uniq.append(h)
        hists = uniq
        if i.cls == 'branch' and i.target not in seen:
            pending.setdefault(i.target, []).extend([list(h) for h in hists])
        if i.uncond:
            hists = []
    assert not pending, pending
    return out, nops


class Asm:
    def __init__(self):
        self.ins = []
        self.vm_seq = 0
        self.vm_done = 0
        self.lg_seq = 0
        self.lg_done = 0
        self.nlabel = 0

    def e(self, text):
        for line in text.split('\n'):
            line = line.strip()
            if line:
                i = Ins(line)
                assert i.cls not in ('vmem', 'ds'), 'use vm()/lg() for memory instructions: ' + line
                self.ins.append(i)

    def c(self, text):
        self.ins.append(Ins('; ' + text))

    def label(self, name):
        self.ins.append(Ins(name + ':'))

    def newlabel(self, stem):
        self.nlabel += 1
        return 'L_%s_%d' % (stem, self.nlabel)

    def vm(self, text):
        i = Ins(text)
        assert i.cls == 'vmem', text
        self.ins.append(i)
        self.vm_seq += 1
        return self.vm_seq

    def lg(self, text):
        i = Ins(text)
        assert i.cls == 'ds', text
        self.ins.append(i)
        self.lg_seq += 1
        return self.lg_seq

    def wait(self, vm=None, lg=None):
        parts = []
        if vm is not None and vm > self.vm_done:
            n = min(self.vm_seq - vm, 63)
            parts.append('vmcnt(%d)' % n)
            self.vm_done = self.vm_seq - n
        if lg is not None and lg > self.lg_done:
            n = min(self.lg_seq - lg, 15)
            parts.append('lgkmcnt(%d)' % n)
            self.lg_done = self.lg_seq - n
        if parts:
            self.ins.append(Ins('s_waitcnt ' + ' '.join(parts)))

    def wait_all(self, vm=True, lg=True, force=False):
        if force:
            parts = (['vmcnt(0)'] if vm else []) + (['lgkmcnt(0)'] if lg else [])
            self.ins.append(Ins('s_waitcnt ' + ' '.join(parts)))
            if vm:
                self.vm_done = self.vm_seq
            if lg:
                self.lg_done = self.lg_seq
        else:
            self.wait(self.vm_seq if vm else None, self.lg_seq if lg else None)

    def text(self):
        ins, nops = pad_hazards(self.ins)
        lines = []
        for i in ins:
            if i.label is not None or i.text.startswith(';'):
                lines.append(i.text)
            else:
                lines.append('    ' + i.text)
        return '\n'.join(lines) + '\n', len([i for i in ins if i.cls != 'none']), nops


def v(a, n=1):
    return 'v%d' % a if n == 1 else 'v[%d:%d]' % (a, a + n - 1)


def a(x, n=1):
    return 'a%d' % x if n == 1 else 'a[%d:%d]' % (x, x + n - 1)


def s(x, n=1):
    return 's%d' % x if n == 1 else 's[%d:%d]' % (x, x + n - 1)
```

```python
import sys
from asmlib import Asm, v, a, s

NAME = 'adaLN_cond__linear_kernel_hedgehog__glu_gated_swiglu__prompt'
KN = NAME + '_kernel'

EPOCH = 0
F_MOD = 0x1000
F_MOD2 = 0x1800
F_WP = 0x2000
F_H = 0x3000
F_KV = 0x4000
F_O = 0x5000
F_H2 = 0x6000
F_HH = 0x7000
F_WO = 0x8000
DUMMY = 0x9000
TS = 0x10000
MODP = 0x20000
ST = 0x30000
KP = 0x70000
KPS = 3584
WF = 0x160000
HF = 0x3E0000
OF = 0x660000
H2F = 0x8E0000
WOF = 0xB60000
W13F = 0xC30000
W2F = 0x1070000
HHF = 0x1290000
WS_END = 0x1950000
BIG = 0x7F000000

L_Y = 0
L_X = 40960
L_SE = 0
L_SL = 20480
L_J1 = 40960
L_SILU = 61440
L_WPHI = 61952
L_IDENT = 66048
L_ZERO = L_IDENT + 800
L_LNR = 67072
L_SCSH = 67584
L_STG = 40960
L_KVT = 50176
L_KVZ = L_KVT + 4096
L_MV = L_KVZ + 128
L_WO = 61440
L_RED = 61440
LDS_BYTES = 163840


def ring_addr(slot):
    return slot * 7168 if slot < 7 else 61440 + (slot - 7) * 7168


WS, XS, OUTS, WQ, WM, CS, WP, SE, SL = 4, 8, 12, 16, 20, 24, 28, 32, 36
TAG = 40
sW, sR, sC, sR2, sC2, sLOC = 42, 43, 44, 45, 46, 47
T0, T1, T2, T3, T4, T5, T6, T7 = 48, 49, 50, 51, 52, 53, 54, 55
sCC, sKQ, sEDST, sLDST, sENK, sT0 = 56, 57, 58, 59, 60, 61
LOG2E = 62
PB = 64
sCNT = 96
sTS = 98
sBIG = 100
sXOFF = 101

vTID, vL, vL16, vA0 = 0, 1, 2, 3
X1P = 4
vA1 = 14
vTS = 15

POLL_LIMIT = 400000


class Gen:
    def __init__(self, stop=99, ts=False, mapping='L'):
        self.k = Asm()
        self.stop = stop
        self.ts = ts
        self.mapping = mapping
        self.nts = 0
        self.tsnames = []

    def stamp(self, name):
        if not self.ts:
            return
        k = self.k
        k.wait_all(vm=False, lg=True)
        k.e('s_memrealtime %s' % s(sTS, 2))
        k.wait_all(vm=False, lg=True, force=True)
        k.e('v_writelane_b32 %s, %s, %d' % (v(vTS), s(sTS), self.nts))
        self.tsnames.append(name)
        self.nts += 1

    def csel(self, dst, x, y):
        self.k.e('s_mov_b32 %s, %d' % (s(dst), y))
        self.k.e('s_cselect_b32 %s, %d, %s' % (s(dst), x, s(dst)))

    def barrier(self):
        self.k.wait_all(vm=False, lg=True)
        self.k.e('s_barrier')

    def srd(self, r, size):
        self.k.e('s_mov_b32 %s, %d\ns_mov_b32 %s, 0x20000' % (s(r + 2), size, s(r + 3)))

    def poll(self, loads, t=250):
        k = self.k
        e = k.e
        top, done = k.newlabel('poll'), k.newlabel('polled')
        at = 0
        for i, (n, off) in enumerate(loads):
            assert n & (n - 1) == 0
            if i == 0:
                e('v_and_b32 %s, %d, %s' % (v(t), n - 1, v(vL)))
                e('v_lshl_add_u32 %s, %s, 2, %s' % (v(t), v(t), s(off)))
            else:
                e('v_and_b32 %s, %d, %s' % (v(t + 1), n - 1, v(vL)))
                e('v_lshl_add_u32 %s, %s, 2, %s' % (v(t + 1), v(t + 1), s(off)))
                e('v_cmp_le_u32 vcc, %d, %s' % (at, v(vL)))
                e('v_cndmask_b32 %s, %s, %s, vcc' % (v(t), v(t), v(t + 1)))
            at += n
        e('s_mov_b32 %s, %d' % (s(sCNT), POLL_LIMIT))
        k.label(top)
        k.vm('buffer_load_dword %s, %s, %s, 0 offen sc1' % (v(t + 1), v(t), s(WS, 4)))
        k.wait_all(vm=True, lg=False, force=True)
        e('v_cmp_ne_u32 vcc, %s, %s' % (s(TAG), v(t + 1)))
        e('s_cmp_eq_u64 vcc, 0')
        e('s_cbranch_scc1 %s' % done)
        e('s_sub_u32 %s, %s, 1' % (s(sCNT), s(sCNT)))
        e('s_cbranch_scc0 %s' % top)
        k.label(done)

    def flag(self, off, tmp=16):
        k = self.k
        k.e('s_cmp_eq_u32 %s, 0' % s(sW))
        k.e('s_cselect_b32 %s, %s, %s' % (s(off), s(off), s(sBIG)))
        k.e('v_mov_b32 %s, %s' % (v(tmp), s(TAG)))
        k.e('s_mov_b64 exec, 1')
        h = k.vm('buffer_store_dword %s, off, %s, %s sc1' % (v(tmp), s(WS, 4), s(off)))
        k.e('s_mov_b64 exec, -1')
        return h

    def dma(self, vaddr, srd, soff, imm=0, sc1=False):
        return self.k.vm('buffer_load_dwordx4 %s, %s, %s offen%s%s lds' % (
            v(vaddr), s(srd, 4), s(soff), ' offset:%d' % imm if imm else '', ' sc1' if sc1 else ''))

    def ld(self, dst, vaddr, srd, soff, imm=0, sc1=False, n=4):
        op = {4: 'dwordx4', 2: 'dwordx2', 1: 'dword'}[n]
        return self.k.vm('buffer_load_%s %s, %s, %s, %s offen%s%s' % (
            op, dst, v(vaddr), s(srd, 4), s(soff) if soff is not None else '0',
            ' offset:%d' % imm if imm else '', ' sc1' if sc1 else ''))

    def st(self, src, vaddr, srd, soff, imm=0, sc1=True, n=4):
        op = {4: 'dwordx4', 2: 'dwordx2', 1: 'dword'}[n]
        return self.k.vm('buffer_store_%s %s, %s, %s, %s offen%s%s' % (
            op, src, v(vaddr), s(srd, 4), s(soff) if soff is not None else '0',
            ' offset:%d' % imm if imm else '', ' sc1' if sc1 else ''))

    def dsr(self, dst, vaddr, off=0, n=4):
        op = {4: 'ds_read_b128', 2: 'ds_read_b64', 1: 'ds_read_b32'}[n]
        assert 0 <= off < 65536
        return self.k.lg('%s %s, %s%s' % (op, dst, v(vaddr), ' offset:%d' % off if off else ''))

    def dstr(self, dst, vaddr, off=0):
        assert 0 <= off < 65536
        return self.k.lg('ds_read_b64_tr_b16 %s, %s%s' % (dst, v(vaddr), ' offset:%d' % off if off else ''))

    def dsw(self, vaddr, src, off=0, n=4):
        op = {4: 'ds_write_b128', 2: 'ds_write_b64', 1: 'ds_write_b32', 0: 'ds_write_b16'}[n]
        assert 0 <= off < 65536
        return self.k.lg('%s %s, %s%s' % (op, v(vaddr), src, ' offset:%d' % off if off else ''))

    def unpack(self, dst, src, n):
        for i in range(n):
            self.k.e('v_lshlrev_b32 %s, 16, %s' % (v(dst + 2 * i), v(src + i)))
            self.k.e('v_and_b32 %s, 0xffff0000, %s' % (v(dst + 2 * i + 1), v(src + i)))

    def pack(self, dst, src, n):
        for i in range(n):
            self.k.e('v_cvt_pk_bf16_f32 %s, %s, %s' % (v(dst + i), v(src + 2 * i), v(src + 2 * i + 1)))

    def xsum(self, x, t, steps):
        k = self.k
        for b in steps:
            if b == 8:
                k.e('v_add_f32_dpp %s, %s, %s row_ror:8 row_mask:0xf bank_mask:0xf' % (v(x), v(x), v(x)))
            else:
                k.e('v_mov_b32 %s, %s' % (v(t), v(x)))
                k.e('v_permlane%d_swap_b32 %s, %s' % (b, v(x), v(t)))
                k.e('v_add_f32 %s, %s, %s' % (v(x), v(x), v(t)))

    def pksum(self, dst, src, npairs):
        k = self.k
        k.e('v_pk_add_f32 %s, %s, %s' % (v(dst, 2), v(src, 2), v(src + 2, 2)))
        for i in range(2, npairs):
            k.e('v_pk_add_f32 %s, %s, %s' % (v(dst, 2), v(dst, 2), v(src + 2 * i, 2)))
        k.e('v_add_f32 %s, %s, %s' % (v(dst), v(dst), v(dst + 1)))

    def prologue(self):
        k = self.k
        e = k.e
        e('s_cmp_ge_u32 s2, 256')
        e('s_cbranch_scc1 L_end')
        e('s_getpc_b64 %s' % s(T0, 2))
        k.label('L_pc')
        e('s_load_dwordx2 %s, s[0:1], 96' % s(WS, 2))
        e('s_load_dwordx2 %s, s[0:1], 72' % s(WM, 2))
        e('s_load_dwordx2 %s, s[0:1], 64' % s(CS, 2))
        e('s_load_dwordx2 %s, s[0:1], 16' % s(WP, 2))
        e('s_load_dwordx2 %s, s[0:1], 8' % s(WQ, 2))
        e('s_load_dwordx2 %s, s[0:1], 0' % s(XS, 2))
        e('s_load_dwordx2 %s, s[0:1], 80' % s(OUTS, 2))
        e('s_load_dwordx2 %s, s[0:1], 24' % s(PB, 2))
        e('s_load_dwordx2 %s, s[0:1], 56' % s(PB + 2, 2))
        e('s_load_dwordx4 %s, s[0:1], 40' % s(PB + 4, 4))
        e('s_lshr_b32 %s, s2, 3' % s(sLOC))
        k.c('warm L2 with this kernel\'s code: each workgroup reads a 4 KiB slice')
        e('s_lshl_b32 %s, %s, 12' % (s(T2), s(sLOC)))
        e('v_lshl_add_u32 v16, v0, 4, %s' % s(T2))
        e('v_min_u32 v16, L_code_end-L_pc-16, v16')
        e('v_mov_b32 v19, %s' % s(T1))
        e('v_add_co_u32 v18, vcc, %s, v16' % s(T0))
        e('v_addc_co_u32 v19, vcc, 0, v19, vcc')
        k.vm('global_load_dwordx4 v[20:23], v[18:19], off')
        if self.ts:
            e('v_mov_b32 %s, 0' % v(vTS))
        e('v_and_b32 %s, 63, v0' % v(vL))
        e('v_lshlrev_b32 %s, 4, %s' % (v(vL16), v(vL)))
        e('v_lshrrev_b32 v16, 6, v0')
        e('v_readfirstlane_b32 %s, v16' % s(sW))
        e('s_mov_b32 %s, 0x%x' % (s(sBIG), BIG))
        e('s_mov_b32 %s, 0x3fb8aa3b\ns_mov_b32 %s, 0x3fb8aa3b' % (s(LOG2E), s(LOG2E + 1)))
        self.srd(WS, WS_END)
        self.srd(WM, 640 * 3840 * 2)
        self.srd(CS, 1280)
        self.srd(WP, 25600)
        self.srd(WQ, 640 * 1920 * 2)
        self.srd(XS, 2048 * 1280)
        self.srd(OUTS, 2048 * 1280)
        self.srd(SL, 640 * 3456)
        e('s_mov_b32 %s, 0x20000' % s(SE + 3))
        k.c('tile coordinates')
        e('s_and_b32 %s, s2, 7' % s(T2))
        if self.mapping == 'L':
            e('s_lshr_b32 %s, %s, 4' % (s(T3), s(sLOC)))
            e('s_lshl1_add_u32 %s, %s, %s' % (s(sR), s(T2), s(T3)))
            e('s_and_b32 %s, %s, 15' % (s(sC), s(sLOC)))
        else:
            e('s_lshr_b32 %s, %s, 1' % (s(T4), s(T2)))
            e('s_lshr_b32 %s, %s, 3' % (s(T3), s(sLOC)))
            e('s_lshl2_add_u32 %s, %s, %s' % (s(sR), s(T4), s(T3)))
            e('s_and_b32 %s, %s, 1' % (s(T4), s(T2)))
            e('s_and_b32 %s, %s, 7' % (s(T3), s(sLOC)))
            e('s_lshl3_add_u32 %s, %s, %s' % (s(sC), s(T4), s(T3)))
        e('s_lshr_b32 %s, %s, 3' % (s(T3), s(sLOC)))
        e('s_lshl2_add_u32 %s, %s, %s' % (s(sR2), s(T2), s(T3)))
        e('s_and_b32 %s, %s, 7' % (s(sC2), s(sLOC)))
        k.c('modulation GEMV unit: 64 columns x 160 rows')
        e('s_sub_u32 %s, s2, 16' % s(T2))
        e('s_cmp_ge_u32 s2, 240')
        e('s_cselect_b32 %s, %s, s2' % (s(T2), s(T2)))
        e('s_mul_i32 %s, %s, 1093' % (s(sKQ), s(T2)))
        e('s_lshr_b32 %s, %s, 16' % (s(sKQ), s(sKQ)))
        e('s_mul_i32 %s, %s, 60' % (s(T3), s(sKQ)))
        e('s_sub_u32 %s, %s, %s' % (s(sCC), s(T2), s(T3)))
        k.c('lane address terms')
        e('v_lshrrev_b32 v16, 3, %s' % v(vL))
        e('v_and_b32 v17, 7, %s' % v(vL))
        e('v_lshlrev_b32 v24, 1, v0')
        e('v_bfe_u32 v25, %s, 4, 1' % v(vL))
        e('v_lshlrev_b32 v25, 1, v25')
        e('v_xor_b32 v25, v25, v17')
        e('v_mul_u32_u24 v26, 7680, v16')
        e('v_lshl_add_u32 v26, v25, 4, v26')
        e('v_xor_b32 v27, 64, v26')
        e('s_waitcnt lgkmcnt(0)')
        e('s_load_dword %s, %s, %d' % (s(TAG), s(WS, 2), EPOCH))
        self.stamp('entry')
        e('s_mul_i32 %s, %s, 320' % (s(T2), s(sKQ)))
        self.h_c = k.vm('buffer_load_ushort v28, v24, %s, %s offen' % (s(CS, 4), s(T2)))
        e('s_mul_i32 %s, %s, 160' % (s(T2), s(sKQ)))
        e('s_mul_i32 %s, %s, 40' % (s(T3), s(sW)))
        e('s_add_u32 %s, %s, %s' % (s(T2), s(T2), s(T3)))
        e('s_mul_i32 %s, %s, 7680' % (s(T2), s(T2)))
        e('s_lshl_b32 %s, %s, 7' % (s(T4), s(sCC)))
        e('s_add_u32 %s, %s, %s' % (s(T2), s(T2), s(T4)))
        e('s_lshl_b32 %s, %s, 7' % (s(T3), s(T3)))
        e('s_add_u32 m0, %s, %d' % (s(T3), L_J1))
        k.c('row bit 3 of piece j is (w + j) & 1: odd waves start with the flipped address')
        e('s_bitcmp1_b32 %s, 0' % s(sW))
        e('s_cselect_b32 %s, 64, 0' % s(T5))
        e('v_xor_b32 v26, %s, v26' % s(T5))
        e('v_xor_b32 v27, %s, v27' % s(T5))
        for j in range(5):
            self.h_wm = self.dma(26 + (j & 1), WM, T2)
            if j < 4:
                e('s_add_u32 %s, %s, %d' % (s(T2), s(T2), 8 * 7680))
                e('s_add_u32 m0, m0, 1024')
        k.c('w_phi of the two heads -> LDS')
        e('s_mul_i32 %s, %s, 1600' % (s(T2), s(sC)))
        e('s_lshl_b32 %s, %s, 10' % (s(T3), s(sW)))
        e('s_add_u32 %s, %s, %s' % (s(T2), s(T2), s(T3)))
        e('s_add_u32 m0, %s, %d' % (s(T3), L_WPHI))
        e('v_lshlrev_b32 v16, 5, v0')
        self.h_wphi = self.dma(vL16, WP, T2)
        k.c('address table of the fold operands')
        e('s_add_u32 %s, %s, L_table-L_pc' % (s(T0), s(T0)))
        e('s_addc_u32 %s, %s, 0' % (s(T1), s(T1)))
        e('v_mov_b32 v19, %s' % s(T1))
        e('v_add_co_u32 v18, vcc, %s, v16' % s(T0))
        e('v_addc_co_u32 v19, vcc, 0, v19, vcc')
        k.vm('global_load_dwordx4 v[144:147], v[18:19], off')
        self.h_tab = k.vm('global_load_dwordx4 v[148:151], v[18:19], off offset:16')
        k.c('raw qkv weight rows for the fold: three 16-row units, two parts, two steps')
        e('v_and_b32 v16, 15, %s' % v(vL))
        e('v_mul_u32_u24 v16, 3840, v16')
        e('v_and_b32 v29, 48, %s' % v(vL))
        e('v_add_u32 v29, v29, v16')
        e('s_mul_i32 %s, %s, %d' % (s(T2), s(sR), 16 * 3840))
        e('s_mul_i32 %s, %s, 80' % (s(T3), s(sC)))
        e('s_add_u32 %s, %s, %s' % (s(T2), s(T2), s(T3)))
        e('s_cmp_eq_u32 %s, 2' % s(sW))
        self.csel(T3, 2560, 1280)
        e('s_cmp_eq_u32 %s, 3' % s(sW))
        e('s_cselect_b32 %s, 0, %s' % (s(T3), s(T3)))
        e('s_cmp_eq_u32 %s, 1' % s(sW))
        e('s_cselect_b32 %s, 2560, 0' % s(T4))
        e('s_add_u32 %s, %s, %s' % (s(T3), s(T3), s(T2)))
        e('s_add_u32 %s, %s, %s' % (s(T4), s(T4), s(T2)))
        self.h_wq = []
        for u in range(3):
            for pi in range(2):
                for st in range(2):
                    h = self.ld(v(64 + 16 * u + 8 * pi + 4 * st, 4), 29, WQ, T3 + pi, 64 * st)
            self.h_wq.append(h)
            if u < 2:
                e('s_add_u32 %s, %s, %d' % (s(T3), s(T3), 256 * 3840))
                e('s_add_u32 %s, %s, %d' % (s(T4), s(T4), 256 * 3840))
        k.c('eight token rows for the first layer norm')
        e('v_mul_u32_u24 v30, 1280, v17')
        e('v_lshrrev_b32 v16, 3, %s' % v(vL))
        e('v_lshl_add_u32 v30, v16, 4, v30')
        e('s_lshl_b32 %s, %s, 4' % (s(T2), s(sR)))
        e('s_add_u32 %s, %s, %s' % (s(T2), s(T2), s(sC)))
        e('s_mul_i32 %s, %s, %d' % (s(T2), s(T2), 8 * 1280))
        e('s_lshl_b32 %s, %s, 7' % (s(T3), s(sW)))
        e('s_add_u32 %s, %s, %s' % (s(T2), s(T2), s(T3)))
        e('s_cmp_lt_u32 %s, 2' % s(sW))
        e('s_cselect_b32 %s, %s, %s' % (s(T3), s(T2), s(sBIG)))
        self.ld(v(32, 4), 30, XS, T2, 0)
        self.ld(v(36, 4), 30, XS, T2, 512)
        self.h_x = self.ld(v(40, 4), 30, XS, T3, 1024)
        k.c('identity matrix and zero words for the fold')
        e('v_mul_u32_u24 v16, 3121, v24')
        e('v_lshrrev_b32 v16, 16, v16')
        e('v_mul_u32_u24 v16, 21, v16')
        e('v_sub_u32 v16, v24, v16')
        e('v_mov_b32 v18, 0x3f80')
        e('v_mov_b32 v19, 0x3f800000')
        e('v_cmp_eq_u32 vcc, 0, v16')
        e('v_cndmask_b32 v18, 0, v18, vcc')
        e('v_cmp_eq_u32 vcc, 20, v16')
        e('v_cndmask_b32 v18, v18, v19, vcc')
        e('v_cmp_gt_u32 vcc, 200, v0')
        e('v_cndmask_b32 v18, 0, v18, vcc')
        e('v_lshlrev_b32 v19, 2, v0')
        e('v_add_u32 v19, %d, v19' % L_IDENT)
        e('s_waitcnt lgkmcnt(0)')
        self.dsw(19, v(18), 0, n=1)
        e('s_add_u32 %s, %s, 0x9e3779b9' % (s(TAG), s(TAG)))
        e('s_mov_b32 %s, %s' % (s(TAG + 1), s(TAG)))
        k.c('relayout sources: early slot = wo (workgroups 216..255) or w2 (0..107); late slot = w1/w3 (0..215)')
        e('s_cmp_ge_u32 s2, 216')
        e('s_cselect_b64 %s, %s, %s' % (s(SE, 2), s(PB, 2), s(PB + 2, 2)))
        self.csel(SE + 2, 640 * 1280, 1728 * 1280)
        e('s_cselect_b32 %s, 20, 54' % s(sENK))
        e('s_cmp_lt_u32 %s, 2' % s(sW))
        e('s_cselect_b64 %s, %s, %s' % (s(SL, 2), s(PB + 4, 2), s(PB + 6, 2)))

    def mod_gemv(self):
        k = self.k
        e = k.e
        k.c('silu(c) in bf16 -> LDS')
        k.wait(vm=self.h_c)
        e('v_lshlrev_b32 v28, 16, v28')
        e('v_mul_f32 v16, 0xbfb8aa3b, v28')
        e('v_exp_f32 v16, v16')
        e('v_add_f32 v16, 1.0, v16')
        e('v_rcp_f32 v16, v16')
        e('v_mul_f32 v16, v16, v28')
        e('v_cvt_pk_bf16_f32 v16, v16, v16')
        e('v_add_u32 v17, %d, v24' % L_SILU)
        self.dsw(17, v(16), 0, n=0)
        k.c('transposing-read address: row 8G+rho, segment w ^ swizzle, 8-byte chunk ci')
        e('v_bfe_u32 v16, %s, 2, 2' % v(vL))
        e('v_lshrrev_b32 v17, 4, %s' % v(vL))
        e('v_lshl_add_u32 v18, v17, 3, v16')
        e('v_lshlrev_b32 v18, 7, v18')
        e('v_lshrrev_b32 v16, 1, v16')
        e('v_and_b32 v19, 1, v17')
        e('v_lshl_add_u32 v16, v19, 1, v16')
        e('v_xor_b32 v16, %s, v16' % s(sW))
        e('v_lshl_add_u32 v18, v16, 5, v18')
        e('v_and_b32 v16, 3, %s' % v(vL))
        e('v_lshl_add_u32 v18, v16, 3, v18')
        e('v_add_u32 v18, %d, v18' % L_J1)
        e('v_lshlrev_b32 v17, 4, v17')
        e('v_add_u32 v17, %d, v17' % L_SILU)
        k.wait(vm=self.h_wphi)
        self.barrier()
        self.stamp('wmod landed')
        hs = []
        for ks in range(5):
            self.dstr(v(44 + 4 * ks, 2), 18, ks * 4096)
            self.dstr(v(46 + 4 * ks, 2), 18, ks * 4096 + 512)
            hs.append(self.dsr(v(220 + 4 * ks, 4), 17, ks * 64))
        e('s_mul_i32 %s, %s, 15360' % (s(T2), s(sKQ)))
        e('s_lshl_b32 %s, %s, 8' % (s(T3), s(sCC)))
        e('s_add_u32 %s, %s, %s' % (s(T2), s(T2), s(T3)))
        e('s_lshl_b32 %s, %s, 6' % (s(T3), s(sW)))
        e('s_add_u32 %s, %s, %s' % (s(T2), s(T2), s(T3)))
        e('s_add_u32 %s, %s, %d' % (s(T2), s(T2), MODP))
        e('v_and_b32 v16, 48, %s' % v(vL))
        for ks in range(5):
            k.wait(lg=hs[ks])
            e('v_mfma_f32_16x16x32_bf16 v[240:243], %s, %s, %s' % (v(44 + 4 * ks, 4), v(220 + 4 * ks, 4), 'v[240:243]' if ks else '0'))
        e('s_mov_b32 exec_lo, 0x00010001\ns_mov_b32 exec_hi, 0x00010001')
        self.h_modst = self.st('v[240:243]', 16, WS, T2)
        e('s_mov_b64 exec, -1')

    def fold(self):
        k = self.k
        e = k.e
        k.c('fold w_phi into the q/k columns, transpose to fragments')
        k.wait(vm=self.h_tab)
        for i in range(8):
            e('v_and_b32 %s, 0xffff, %s' % (v(152 + 2 * i), v(144 + i)))
            e('v_lshrrev_b32 %s, 16, %s' % (v(153 + 2 * i), v(144 + i)))
        hs = []
        for i in range(16):
            hs.append(self.dstr(v(112 + 2 * i, 2), 152 + i, L_WPHI))
        e('s_mul_i32 %s, %s, 163840' % (s(T2), s(sC)))
        e('s_mul_i32 %s, %s, 3' % (s(T3), s(sR)))
        e('s_add_u32 %s, %s, %s' % (s(T3), s(T3), s(sW)))
        e('s_add_u32 %s, %s, 40' % (s(T3), s(T3)))
        e('s_cmp_eq_u32 %s, 3' % s(sW))
        e('s_cselect_b32 %s, %s, %s' % (s(T3), s(sR), s(T3)))
        self.csel(T4, 16 * 1024, 48 * 1024)
        e('s_lshl_b32 %s, %s, 10' % (s(T3), s(T3)))
        e('s_add_u32 %s, %s, %s' % (s(T2), s(T2), s(T3)))
        e('s_add_u32 %s, %s, %d' % (s(T2), s(T2), WF))
        k.wait(lg=hs[-1])
        for u in range(3):
            k.wait(vm=self.h_wq[u])
            d = 168 + 8 * (u & 1)
            for pi in range(2):
                for st in range(2):
                    for hf in range(2):
                        first = pi == 0 and st == 0
                        e('v_mfma_f32_16x16x32_bf16 %s, %s, %s, %s' % (
                            v(d + 4 * hf, 4), v(64 + 16 * u + 8 * pi + 4 * st, 4),
                            v(112 + 16 * hf + 8 * pi + 4 * st, 4), '0' if first else v(d + 4 * hf, 4)))
            o = 244 + 4 * u
            e('v_cvt_pk_bf16_f32 %s, %s, %s' % (v(o), v(d), v(d + 1)))
            e('v_cvt_pk_bf16_f32 %s, %s, %s' % (v(o + 1), v(d + 2), v(d + 3)))
            e('v_cvt_pk_bf16_f32 %s, %s, %s' % (v(o + 2), v(d + 4), v(d + 5)))
            e('v_cvt_pk_bf16_f32 %s, %s, %s' % (v(o + 3), v(d + 6), v(d + 7)))
            e('v_permlane16_swap_b32 %s, %s' % (v(o), v(o + 2)))
            e('v_permlane16_swap_b32 %s, %s' % (v(o + 1), v(o + 3)))
            if u == 2:
                e('s_cmp_lt_u32 %s, 8' % s(sR))
                e('s_cselect_b32 %s, %s, %s' % (s(T2), s(T2), s(sBIG)))
            self.h_wfst = self.st(v(o, 4), vL16, WS, T2)
            if u < 2:
                e('s_add_u32 %s, %s, %s' % (s(T2), s(T2), s(T4)))

    def mod_flag(self):
        k = self.k
        e = k.e
        k.c('publish the modulation partial')
        e('s_cmp_ge_u32 %s, 10' % s(sCC))
        e('s_cselect_b32 %s, 10, 0' % s(T2))
        e('s_cselect_b32 %s, 4, 0' % s(T3))
        e('s_sub_u32 %s, %s, %s' % (s(T2), s(sCC), s(T2)))
        e('s_and_b32 %s, %s, 3' % (s(T4), s(T2)))
        e('s_lshl_b32 %s, %s, 5' % (s(T4), s(T4)))
        e('s_lshr_b32 %s, %s, 2' % (s(T2), s(T2)))
        e('s_lshl3_add_u32 %s, %s, %s' % (s(T2), s(T2), s(T3)))
        e('s_add_u32 %s, %s, %s' % (s(T2), s(T2), s(T4)))
        e('s_add_u32 %s, %s, %s' % (s(T2), s(T2), s(sKQ)))
        e('s_lshl2_add_u32 %s, %s, %d' % (s(T2), s(T2), F_MOD))
        e('s_lshl2_add_u32 %s, %s, %s' % (s(T3), s(sCC), s(sKQ)))
        e('s_lshl2_add_u32 %s, %s, %d' % (s(T3), s(T3), F_MOD2))
        e('s_cmp_lt_u32 %s, 20' % s(sCC))
        e('s_cselect_b32 %s, %s, %s' % (s(T2), s(T2), s(T3)))
        e('s_cmp_lt_u32 s2, 240')
        e('s_cselect_b32 %s, %s, %s' % (s(T2), s(T2), s(sBIG)))
        k.wait(vm=self.h_modst)
        self.barrier()
        self.flag(T2)
        self.stamp('mod flag')

    def relayout_loads(self):
        k = self.k
        e = k.e
        k.c('early relayout slot: 32 rows x 320 columns, each wave its own 8 rows')
        e('s_sub_u32 %s, s2, 216' % s(T2))
        e('s_cmp_ge_u32 s2, 216')
        e('s_cselect_b32 %s, %s, s2' % (s(T2), s(T2)))
        self.csel(T5, WOF, W2F)
        e('s_cmp_ge_u32 %s, %s' % (s(T2), s(sENK)))
        e('s_cselect_b32 %s, %s, 0' % (s(T3), s(sENK)))
        e('s_cselect_b32 %s, 1, 0' % s(T4))
        e('s_sub_u32 %s, %s, %s' % (s(T2), s(T2), s(T3)))
        e('s_lshl2_add_u32 %s, %s, %s' % (s(T3), s(T3), s(T2)))
        e('s_mul_i32 %s, %s, 5120' % (s(T3), s(T3)))
        e('s_add_u32 %s, %s, %s' % (s(T3), s(T3), s(T5)))
        e('s_lshl_b32 %s, %s, 8' % (s(T5), s(sW)))
        e('s_add_u32 %s, %s, %s' % (s(sEDST), s(T3), s(T5)))
        e('s_lshl2_add_u32 %s, %s, %s' % (s(T3), s(T2), s(sW)))
        e('s_mul_i32 %s, %s, %d' % (s(T3), s(T3), 8 * 1280))
        e('s_mul_i32 %s, %s, 640' % (s(T4), s(T4)))
        e('s_add_u32 %s, %s, %s' % (s(T3), s(T3), s(T4)))
        e('s_cmp_lt_u32 %s, %s' % (s(T2), s(sENK)))
        e('s_cselect_b32 %s, %s, %s' % (s(T3), s(T3), s(sBIG)))
        e('s_cselect_b32 %s, %s, %s' % (s(sEDST), s(sEDST), s(sBIG)))
        e('s_mul_i32 %s, %s, 5120' % (s(T4), s(sW)))
        e('s_add_u32 m0, %s, %d' % (s(T4), L_SE))
        for j in range(5):
            e('v_add_u32 v16, %d, %s' % (64 * j, v(vL)))
            e('v_mul_u32_u24 v17, 1639, v16')
            e('v_lshrrev_b32 v17, 16, v17')
            e('v_mul_u32_u24 v17, 640, v17')
            e('v_lshl_add_u32 v17, v16, 4, v17')
            self.dma(17, SE, T3)
            if j < 4:
                e('s_add_u32 m0, m0, 1024')
        k.c('late relayout slot: 80 rows x 64 columns of w1 (waves 0,1) and w3 (waves 2,3)')
        e('s_mul_i32 %s, s2, 2428' % s(T2))
        e('s_lshr_b32 %s, %s, 16' % (s(T2), s(T2)))
        e('s_mul_i32 %s, %s, 27' % (s(T3), s(T2)))
        e('s_sub_u32 %s, s2, %s' % (s(T3), s(T3)))
        e('s_mul_i32 %s, %s, 540' % (s(T4), s(T2)))
        e('s_lshl2_add_u32 %s, %s, %s' % (s(T4), s(T3), s(T4)))
        e('s_add_u32 %s, %s, %s' % (s(T4), s(T4), s(sW)))
        e('s_lshl_b32 %s, %s, 10' % (s(T4), s(T4)))
        e('s_add_u32 %s, %s, %d' % (s(sLDST), s(T4), W13F))
        e('s_and_b32 %s, %s, 1' % (s(T4), s(sW)))
        e('s_lshl1_add_u32 %s, %s, %s' % (s(T4), s(T2), s(T4)))
        e('s_mul_i32 %s, %s, %d' % (s(T4), s(T4), 40 * 3456))
        e('s_lshl_b32 %s, %s, 7' % (s(T3), s(T3)))
        e('s_add_u32 %s, %s, %s' % (s(T3), s(T3), s(T4)))
        e('s_cmp_lt_u32 s2, 216')
        e('s_cselect_b32 %s, %s, %s' % (s(T3), s(T3), s(sBIG)))
        e('s_cselect_b32 %s, %s, %s' % (s(sLDST), s(sLDST), s(sBIG)))
        e('s_mul_i32 %s, %s, 5120' % (s(T4), s(sW)))
        e('s_add_u32 m0, %s, %d' % (s(T4), L_SL))
        e('s_and_b32 %s, %s, 2' % (s(T4), s(sW)))
        e('s_lshl_b32 %s, %s, 1' % (s(T4), s(T4)))
        e('v_xor_b32 v16, %s, v25' % s(T4))
        e('v_lshrrev_b32 v17, 3, %s' % v(vL))
        e('v_mul_u32_u24 v17, 3456, v17')
        e('v_lshl_add_u32 v17, v16, 4, v17')
        for j in range(5):
            self.h_rl = self.dma(17, SL, T3)
            if j < 4:
                e('s_add_u32 %s, %s, %d' % (s(T3), s(T3), 8 * 3456))
                e('s_add_u32 m0, m0, 1024')

    def ln1_stats(self):
        k = self.k
        e = k.e
        XN = 176
        k.c('layer norm statistics of the eight rows')
        self.unpack(XN, 32, 12)
        self.pksum(16, XN, 12)
        self.xsum(16, 18, (8, 16, 32))
        e('v_and_b32 v19, 7, %s' % v(vL))
        e('s_lshl_b32 %s, %s, 2' % (s(T2), s(sW)))
        e('s_add_u32 %s, %s, %d' % (s(T2), s(T2), L_LNR))
        e('v_lshl_add_u32 v20, v19, 4, %s' % s(T2))
        e('v_lshlrev_b32 v19, 4, v19')
        e('v_add_u32 v19, %d, v19' % L_LNR)
        self.dsw(20, v(16), 0, n=1)
        e('s_lshl_b32 %s, %s, 7' % (s(T2), s(sC)))
        e('s_lshl2_add_u32 %s, %s, %s' % (s(T2), s(sR), s(T2)))
        e('s_add_u32 %s, %s, %d' % (s(T2), s(T2), F_WP))
        k.wait(vm=self.h_wfst)
        self.barrier()
        h = self.dsr(v(44, 4), 19)
        self.flag(T2, tmp=21)
        self.stamp('wp flag')
        k.wait(lg=h)
        e('v_add_f32 v44, v44, v45')
        e('v_add_f32 v46, v46, v47')
        e('v_add_f32 v44, v44, v46')
        e('v_mul_f32 v44, 0xbacccccd, v44')
        for i in range(12):
            e('v_pk_add_f32 %s, %s, v[44:45] op_sel_hi:[1,0]' % (v(XN + 2 * i, 2), v(XN + 2 * i, 2)))
        e('v_pk_mul_f32 v[16:17], %s, %s' % (v(XN, 2), v(XN, 2)))
        for i in range(1, 8):
            e('v_pk_fma_f32 v[16:17], %s, %s, v[16:17]' % (v(XN + 2 * i, 2), v(XN + 2 * i, 2)))
        skip = k.newlabel('ln')
        e('s_cmp_ge_u32 %s, 2' % s(sW))
        e('s_cbranch_scc1 %s' % skip)
        for i in range(8, 12):
            e('v_pk_fma_f32 v[16:17], %s, %s, v[16:17]' % (v(XN + 2 * i, 2), v(XN + 2 * i, 2)))
        k.label(skip)
        e('v_add_f32 v16, v16, v17')
        self.xsum(16, 18, (8, 16, 32))
        self.dsw(20, v(16), 128, n=1)
        self.barrier()
        h = self.dsr(v(44, 4), 19, 128)
        k.wait(lg=h)
        e('v_add_f32 v44, v44, v45')
        e('v_add_f32 v46, v46, v47')
        e('v_add_f32 v44, v44, v46')
        e('v_mov_b32 v45, 0x3727c5ac')
        e('v_fmac_f32 v45, 0x3acccccd, v44')
        e('v_rsq_f32 v44, v45')
        for i in range(12):
            e('v_pk_mul_f32 %s, %s, v[44:45] op_sel_hi:[1,0]' % (v(XN + 2 * i, 2), v(XN + 2 * i, 2)))

    def round_mod(self, dst, p, add):
        e = self.k.e
        for h in range(2):
            e('v_pk_add_f32 %s, %s, %s' % (v(p + 2 * h, 2), v(p + 2 * h, 2), v(p + 4 + 2 * h, 2)))
            e('v_pk_add_f32 %s, %s, %s' % (v(p + 8 + 2 * h, 2), v(p + 8 + 2 * h, 2), v(p + 12 + 2 * h, 2)))
        for h in range(2):
            e('v_pk_add_f32 %s, %s, %s' % (v(p + 2 * h, 2), v(p + 2 * h, 2), v(p + 8 + 2 * h, 2)))
        self.pack(p + 4, p, 2)
        self.unpack(p, p + 4, 2)
        for h in range(2):
            e('v_pk_add_f32 %s, %s, %s op_sel_hi:[1,0]' % (v(p + 2 * h, 2), v(p + 2 * h, 2), v(add, 2)))
        self.pack(p + 4, p, 2)
        self.unpack(dst, p + 4, 2)

    def make_h(self):
        k = self.k
        e = k.e
        XN = 176
        k.c('gather shift/scale for this wave\'s columns')
        e('v_lshrrev_b32 v16, 5, %s' % v(vL))
        e('v_bfe_u32 v17, %s, 4, 1' % v(vL))
        e('v_and_b32 v18, 15, %s' % v(vL))
        e('v_lshlrev_b32 v18, 4, v18')
        e('v_mul_u32_u24 v19, 2560, v16')
        e('v_lshl_add_u32 v19, v17, 10, v19')
        e('v_add_u32 v19, v19, v18')
        e('v_mul_u32_u24 v20, 2560, v17')
        e('v_add_u32 v20, v20, v18')
        e('s_mul_i32 %s, %s, 1536' % (s(T6), s(sW)))
        e('s_add_u32 %s, %s, %d' % (s(T6), s(T6), L_SCSH))
        e('v_mul_u32_u24 v21, 768, v16')
        e('v_lshl_add_u32 v21, v17, 8, v21')
        e('v_add3_u32 v21, v21, v18, %s' % s(T6))
        e('v_mul_u32_u24 v22, 768, v17')
        e('v_add3_u32 v22, v22, v18, %s' % s(T6))
        e('v_cvt_f32_u32 v26, v16')
        e('v_cvt_f32_u32 v28, v17')
        e('v_lshrrev_b32 v23, 3, %s' % v(vL))
        e('v_lshl_add_u32 v24, v23, 5, %s' % s(T6))
        e('v_and_b32 v16, 7, %s' % v(vL))
        e('v_lshlrev_b32 v16, 4, v16')
        e('v_lshl_add_u32 v23, v23, 9, v16')
        e('s_lshl_b32 %s, %s, 8' % (s(T4), s(sW)))
        e('s_add_u32 %s, %s, %d' % (s(T4), s(T4), MODP))
        e('s_lshl_b32 %s, %s, 7' % (s(T2), s(sW)))
        e('s_add_u32 %s, %s, %d' % (s(T2), s(T2), F_MOD))
        e('s_cmp_lt_u32 %s, 2' % s(sW))
        e('s_cselect_b32 %s, 64, 0' % s(T3))
        e('s_add_u32 %s, %s, %s' % (s(T3), s(T3), s(T2)))
        self.poll([(16, T2), (8, T3)])
        self.stamp('mod seen')
        hs = []
        for kq in range(4):
            self.ld(v(64 + 4 * kq, 4), 19, WS, T4, 0, sc1=True)
            hs.append(self.ld(v(80 + 4 * kq, 4), 20, WS, T4, 2048, sc1=True))
            if kq < 3:
                e('s_add_u32 %s, %s, 15360' % (s(T4), s(T4)))
        e('s_lshr_b32 %s, %s, 2' % (s(T2), s(sC)))
        e('s_lshl2_add_u32 %s, %s, %s' % (s(T2), s(sR), s(T2)))
        e('s_mul_i32 %s, %s, 40960' % (s(T2), s(T2)))
        e('s_and_b32 %s, %s, 3' % (s(T3), s(sC)))
        e('s_lshl_b32 %s, %s, 7' % (s(T3), s(T3)))
        e('s_add_u32 %s, %s, %s' % (s(T2), s(T2), s(T3)))
        e('s_lshl_b32 %s, %s, 12' % (s(T3), s(sW)))
        e('s_add_u32 %s, %s, %s' % (s(T2), s(T2), s(T3)))
        e('s_add_u32 %s, %s, %d' % (s(T2), s(T2), HF))
        e('s_add_u32 %s, %s, 16384' % (s(T3), s(T2)))
        e('s_add_u32 %s, %s, 32768' % (s(T4), s(T2)))
        e('s_cmp_lt_u32 %s, 2' % s(sW))
        e('s_cselect_b32 %s, %s, %s' % (s(T4), s(T4), s(sBIG)))
        k.wait(vm=hs[-1])
        self.round_mod(44, 64, 26)
        self.dsw(21, v(44, 4))
        self.round_mod(48, 80, 28)
        self.dsw(22, v(48, 4), 512)
        k.wait_all(vm=False, lg=True)
        hs = []
        for j in range(3):
            self.dsr(v(96 + 16 * j, 4), 24, 256 * j)
            self.dsr(v(100 + 16 * j, 4), 24, 256 * j + 16)
            self.dsr(v(104 + 16 * j, 4), 24, 768 + 256 * j)
            hs.append(self.dsr(v(108 + 16 * j, 4), 24, 768 + 256 * j + 16))
        for j in range(3):
            k.wait(lg=hs[j])
            for i in range(4):
                e('v_pk_fma_f32 %s, %s, %s, %s' % (v(XN + 8 * j + 2 * i, 2), v(XN + 8 * j + 2 * i, 2),
                                                 v(104 + 16 * j + 2 * i, 2), v(96 + 16 * j + 2 * i, 2)))
            self.pack(52 + 4 * j, XN + 8 * j, 4)
            self.st(v(52 + 4 * j, 4), 23, WS, T2 + j)
        e('s_lshl_b32 %s, %s, 7' % (s(T2), s(sR)))
        e('s_lshl2_add_u32 %s, %s, %s' % (s(T2), s(sC), s(T2)))
        e('s_add_u32 %s, %s, %d' % (s(T2), s(T2), F_H))
        k.wait_all()
        self.barrier()
        self.flag(T2)
        self.stamp('h flag')

    def p1_loads(self):
        k = self.k
        e = k.e
        e('s_lshl_b32 %s, %s, 7' % (s(T2), s(sC)))
        e('s_add_u32 %s, %s, %d' % (s(T2), s(T2), F_WP))
        self.poll([(16, T2)])
        self.stamp('wp seen')
        k.c('folded qkv weights, tiles 0..2 -> LDS')
        e('s_mul_i32 %s, %s, 163840' % (s(T7), s(sC)))
        e('s_add_u32 %s, %s, %d' % (s(T7), s(T7), WF))
        e('s_lshl_b32 %s, %s, 12' % (s(T3), s(sW)))
        e('s_add_u32 %s, %s, %d' % (s(T3), s(T3), L_X))
        e('s_add_u32 %s, %s, %s' % (s(T2), s(T7), s(T3)))
        e('s_mov_b32 m0, %s' % s(T3))
        for i in range(7):
            for j in range(4):
                self.dma(vL16, WS, T2, 1024 * j, sc1=True)
            if i < 6:
                e('s_add_u32 %s, %s, 16384' % (s(T2), s(T2)))
                e('s_add_u32 m0, m0, 16384')
        e('s_lshl_b32 %s, %s, 11' % (s(T3), s(sW)))
        e('s_add_u32 %s, %s, %d' % (s(T3), s(T3), L_X + 112 * 1024))
        e('s_add_u32 %s, %s, %s' % (s(T2), s(T7), s(T3)))
        e('s_mov_b32 m0, %s' % s(T3))
        for j in range(2):
            self.h_bx = self.dma(vL16, WS, T2, 1024 * j, sc1=True)
        k.c('early relayout: transposing reads and stores')
        e('v_bfe_u32 v16, %s, 2, 2' % v(vL))
        e('v_lshrrev_b32 v17, 4, %s' % v(vL))
        e('v_and_b32 v18, 3, %s' % v(vL))
        e('v_mul_u32_u24 v19, 640, v16')
        e('v_mul_u32_u24 v20, 160, v17')
        e('v_mul_u32_u24 v21, 40, v18')
        e('v_add3_u32 v19, v19, v20, v21')
        e('s_mul_i32 %s, %s, 5120' % (s(T3), s(sW)))
        e('s_add_u32 %s, %s, %d' % (s(T3), s(T3), L_SE))
        e('v_add_u32 v19, %s, v19' % s(T3))
        e('v_and_b32 v20, 1, %s' % v(vL))
        e('v_lshl_add_u32 v21, v20, 3, v19')
        e('v_xor_b32 v20, 1, v20')
        e('v_lshl_add_u32 v22, v20, 5, v19')
        hs = []
        for t in range(5):
            for kh in range(2):
                h = self.dstr(v(112 + 4 * t + 2 * kh, 2), 21 if t < 4 else 22, 2560 * kh + (8 * t if t < 4 else 0))
            hs.append(h)
        k.c('late relayout: transposing reads, parked in registers')
        e('v_and_b32 v19, 1, v17')
        e('v_lshrrev_b32 v20, 1, v17')
        e('v_lshl_add_u32 v20, v20, 3, v16')
        e('v_lshlrev_b32 v20, 7, v20')
        e('v_mul_u32_u24 v23, 10240, v19')
        e('v_add_u32 v20, v20, v23')
        e('v_lshrrev_b32 v16, 1, v16')
        e('v_lshl_add_u32 v16, v19, 1, v16')
        e('v_xor_b32 v16, %s, v16' % s(sW))
        e('v_lshl_add_u32 v20, v16, 5, v20')
        e('v_and_b32 v16, 1, v18')
        e('v_lshl_add_u32 v20, v16, 4, v20')
        e('v_lshrrev_b32 v16, 1, v18')
        e('v_lshl_add_u32 v20, v16, 3, v20')
        e('s_mul_i32 %s, %s, 5120' % (s(T3), s(sENK)))
        e('v_mul_lo_u32 v23, v17, %s' % s(T3))
        e('v_and_b32 v16, 15, %s' % v(vL))
        e('v_lshl_add_u32 v23, v16, 4, v23')
        e('s_add_u32 %s, %s, 4096' % (s(T3), s(sEDST)))
        for t in range(5):
            k.wait(lg=hs[t])
            self.h_est = self.st(v(112 + 4 * t, 4), 23, WS, sEDST if t < 4 else T3, 1024 * t if t < 4 else 0)
        for ks in range(5):
            for kh in range(2):
                self.dstr(v(200 + 4 * ks + 2 * kh, 2), 20, L_SL + 2048 * ks + 512 * kh)
        e('s_lshl_b32 %s, %s, 7' % (s(T2), s(sR)))
        e('s_add_u32 %s, %s, %d' % (s(T2), s(T2), F_H))
        self.poll([(16, T2)])
        self.stamp('h seen')
        k.c('activation fragments -> accumulation registers')
        e('s_lshl2_add_u32 %s, %s, %s' % (s(T2), s(sR), s(sW)))
        e('s_mul_i32 %s, %s, 40960' % (s(T2), s(T2)))
        e('s_add_u32 %s, %s, %d' % (s(T2), s(T2), HF))
        self.h_a = []
        for ks in range(40):
            self.h_a.append(self.ld(a(4 * ks, 4), vL16, WS, T2, 1024 * (ks & 3), sc1=True))
            if ks & 3 == 3 and ks < 39:
                e('s_add_u32 %s, %s, 4096' % (s(T2), s(T2)))
        e('s_sub_u32 %s, s2, 216' % s(T2))
        e('s_cmp_ge_u32 %s, 20' % s(T2))
        e('s_cselect_b32 %s, 12, 0' % s(T3))
        e('s_add_u32 %s, %s, %s' % (s(T2), s(T2), s(T3)))
        e('s_lshl2_add_u32 %s, %s, %d' % (s(T2), s(T2), F_WO))
        e('s_cmp_ge_u32 s2, 216')
        e('s_cselect_b32 %s, %s, %s' % (s(T2), s(T2), s(sBIG)))
        e('v_add_u32 %s, %d, %s' % (v(vA0), L_X, v(vL16)))
        e('v_add_u32 %s, %d, %s' % (v(vA1), L_X + 65536, v(vL16)))
        k.wait(vm=self.h_est)
        self.barrier()
        self.flag(T2)
        k.c('tile 3 weights -> LDS')
        e('s_mul_i32 %s, %s, 10240' % (s(T3), s(sW)))
        e('s_add_u32 %s, %s, %s' % (s(T2), s(T7), s(T3)))
        e('s_mov_b32 m0, %s' % s(T3))
        for j in range(10):
            self.h_by = self.dma(vL16, WS, T2, 1024 * (j & 3), sc1=True)
            if j & 3 == 3:
                e('s_add_u32 %s, %s, 4096' % (s(T2), s(T2)))
                e('s_add_u32 m0, m0, 4096')
        self.stamp('p1 start')

    def gemm_lds(self, op, items, buf, nbuf, pd, hooks=None):
        k = self.k
        hs = {}

        def issue(i):
            if i < len(items):
                hs[i] = self.dsr(v(buf + 4 * (i % nbuf), 4), items[i][2], items[i][3])
        for i in range(pd):
            issue(i)
        for i, (acc, first, _, _, other, hv) in enumerate(items):
            k.wait(vm=hv, lg=hs[i])
            k.e('%s %s, %s, %s, %s' % (op, acc, v(buf + 4 * (i % nbuf), 4), other, '0' if first else acc))
            if hooks and i in hooks:
                hooks[i]()
            issue(i + pd)

    def softmax(self, P, E, OUT, t):
        e = self.k.e
        mx, mn, sp, sm = t, t + 2, t + 4, t + 6
        e('v_max3_f32 %s, %s, %s, %s' % (v(mx), v(P), v(P + 1), v(P + 2)))
        e('v_min3_f32 %s, %s, %s, %s' % (v(mn), v(P), v(P + 1), v(P + 2)))
        for i in range(3, 19, 2):
            e('v_max3_f32 %s, %s, %s, %s' % (v(mx), v(mx), v(P + i), v(P + i + 1)))
            e('v_min3_f32 %s, %s, %s, %s' % (v(mn), v(mn), v(P + i), v(P + i + 1)))
        e('v_max_f32 %s, %s, %s' % (v(mx), v(mx), v(P + 19)))
        e('v_min_f32 %s, %s, %s' % (v(mn), v(mn), v(P + 19)))
        for i in range(10):
            e('v_pk_add_f32 %s, %s, %s op_sel_hi:[1,0] neg_lo:[0,1] neg_hi:[0,1]' % (v(E + 2 * i, 2), v(P + 2 * i, 2), v(mx, 2)))
            e('v_pk_add_f32 %s, %s, %s op_sel_hi:[1,0] neg_lo:[1,0] neg_hi:[1,0]' % (v(E + 20 + 2 * i, 2), v(P + 2 * i, 2), v(mn, 2)))
        for i in range(20):
            e('v_pk_mul_f32 %s, %s, %s' % (v(E + 2 * i, 2), v(E + 2 * i, 2), s(LOG2E, 2)))
        for i in range(40):
            e('v_exp_f32 %s, %s' % (v(E + i), v(E + i)))
        e('v_pk_add_f32 %s, %s, %s' % (v(sp, 2), v(E, 2), v(E + 2, 2)))
        e('v_pk_add_f32 %s, %s, %s' % (v(sm, 2), v(E + 20, 2), v(E + 22, 2)))
        for i in range(2, 10):
            e('v_pk_add_f32 %s, %s, %s' % (v(sp, 2), v(sp, 2), v(E + 2 * i, 2)))
            e('v_pk_add_f32 %s, %s, %s' % (v(sm, 2), v(sm, 2), v(E + 20 + 2 * i, 2)))
        e('v_add_f32 %s, %s, %s' % (v(sp), v(sp), v(sp + 1)))
        e('v_add_f32 %s, %s, %s' % (v(sm), v(sm), v(sm + 1)))
        e('v_rcp_f32 %s, %s' % (v(sp), v(sp)))
        e('v_rcp_f32 %s, %s' % (v(sm), v(sm)))
        for i in range(20):
            e('v_pk_mul_f32 %s, %s, %s op_sel_hi:[1,0]' % (v(E + 2 * i, 2), v(E + 2 * i, 2), v(sp if i < 10 else sm, 2)))
        self.pack(OUT, E, 20)

    def wo_dma(self, lo, hi):
        k = self.k
        e = k.e
        per = (hi - lo) // 4
        e('s_mul_i32 %s, %s, %d' % (s(T3), s(sW), per * 1024))
        e('s_add_u32 m0, %s, %d' % (s(T3), L_WO + lo * 1024))
        e('s_mul_i32 %s, %s, 102400' % (s(T2), s(sC2)))
        e('s_add_u32 %s, %s, %s' % (s(T2), s(T2), s(T3)))
        e('s_add_u32 %s, %s, %d' % (s(T2), s(T2), WOF + lo * 1024))
        for j in range(per):
            self.h_wo = self.dma(vL16, WS, T2, 1024 * (j & 3), sc1=True)
            if j & 3 == 3 and j < per - 1:
                e('s_add_u32 %s, %s, 4096' % (s(T2), s(T2)))
                e('s_add_u32 m0, m0, 4096')

    def p1(self):
        k = self.k
        e = k.e
        ACC, BUF = 16, 80
        M32 = 'v_mfma_f32_32x32x16_bf16'
        k.c('qkv projection, tiles 0..2 (k, v and the first q features)')

        def late_store(ks):
            def f():
                self.h_lst = self.st(v(200 + 4 * ks, 4), vL16, WS, sLDST)
                if ks < 4:
                    e('s_add_u32 %s, %s, %d' % (s(sLDST), s(sLDST), 108 * 1024))
            return f
        items = []
        for ks in range(40):
            for t in range(3):
                n = 3 * ks + t
                items.append((v(ACC + 16 * t, 16), ks == 0, vA0 if n < 64 else vA1, (n % 64) * 1024, a(4 * ks, 4), self.h_a[ks]))
        self.gemm_lds(M32, items, BUF, 8, 4, {90 + 3 * i: late_store(i) for i in range(5)})
        self.stamp('pass a done')
        e('s_lshr_b32 %s, %s, 2' % (s(T2), s(sC2)))
        e('s_lshl_b32 %s, %s, 7' % (s(T2), s(T2)))
        e('s_add_u32 %s, %s, %d' % (s(T2), s(T2), F_WO))
        e('s_add_u32 %s, %s, 64' % (s(T3), s(T2)))
        self.poll([(16, T2), (4, T3)])
        k.wait(vm=self.h_by)
        self.barrier()
        self.wo_dma(12, 100)
        k.c('feature map of k, staged with v as [token][phi 40 | v 20 | 1 | 0 0 0]')
        E, SD, TM = 112, 152, 184
        self.softmax(ACC, E, SD, TM)
        self.pack(SD + 20, ACC + 20, 10)
        e('v_mov_b32 %s, 0x3f80' % v(SD + 30))
        e('v_mov_b32 %s, 0' % v(SD + 31))
        e('v_lshrrev_b32 v192, 5, %s' % v(vL))
        e('v_lshlrev_b32 v192, 14, v192')
        e('v_and_b32 v193, 31, %s' % v(vL))
        e('v_lshl_add_u32 v192, v193, 7, v192')
        e('v_and_b32 v193, 7, %s' % v(vL))
        e('v_lshl_add_u32 v192, v193, 4, v192')
        e('s_lshl_b32 %s, %s, 12' % (s(T2), s(sW)))
        e('s_add_u32 %s, %s, %d' % (s(T2), s(T2), L_STG))
        e('v_add_u32 v192, %s, v192' % s(T2))
        for p in range(8):
            if p:
                e('v_xor_b32 %s, %d, v192' % (v(192 + p), 16 * p))
            self.dsw(192 + p, v(SD + 4 * p, 4))
        k.c('addresses of the transposing reads: token 4G+rho, piece 2*block + (ci>>1), swizzled')
        e('v_lshrrev_b32 v112, 2, %s' % v(vL))
        e('v_and_b32 v113, 7, v112')
        e('v_bfe_u32 v114, %s, 1, 1' % v(vL))
        e('v_xor_b32 v113, v113, v114')
        e('v_lshlrev_b32 v112, 7, v112')
        e('v_lshl_add_u32 v112, v113, 4, v112')
        e('v_and_b32 v113, 1, %s' % v(vL))
        e('v_lshl_add_u32 v112, v113, 3, v112')
        e('s_lshr_b32 %s, %s, 1' % (s(T2), s(sW)))
        e('s_lshl_b32 %s, %s, 14' % (s(T2), s(T2)))
        e('s_add_u32 %s, %s, %d' % (s(T2), s(T2), L_STG))
        e('v_add_u32 v112, %s, v112' % s(T2))
        e('v_xor_b32 v113, 32, v112')
        e('v_xor_b32 v114, 64, v112')
        e('s_and_b32 %s, %s, 1' % (s(T3), s(sW)))
        e('s_lshl_b32 %s, %s, 5' % (s(T4), s(T3)))
        e('v_xor_b32 v115, %s, v114' % s(T4))
        self.barrier()
        KF = 184
        hs = []
        for ks in range(4):
            for b in range(4):
                for kh in range(2):
                    h = self.dstr(v(KF + 16 * ks + 4 * b + 2 * kh, 2), 112 + b, 4096 * ks + 2048 * kh)
            hs.append(h)
        k.c('store offsets of the partial kv: [head][d 21][f 40] bf16')
        e('v_and_b32 v116, 15, %s' % v(vL))
        e('s_lshl_b32 %s, %s, 4' % (s(T4), s(T3)))
        e('s_sub_u32 %s, %s, 8' % (s(T4), s(T4)))
        e('v_add_u32 v116, %s, v116' % s(T4))
        e('v_cmp_gt_u32 vcc, 21, v116')
        e('v_mul_u32_u24 v117, 80, v116')
        e('v_lshrrev_b32 v118, 4, %s' % v(vL))
        e('v_lshl_add_u32 v117, v118, 3, v117')
        e('v_mov_b32 v119, %s' % s(sBIG))
        e('v_cndmask_b32 v117, v119, v117, vcc')
        e('v_cmp_gt_u32 vcc, 2, v118')
        e('v_cndmask_b32 v118, v119, v117, vcc')
        e('s_lshl_b32 %s, %s, 4' % (s(T2), s(sC)))
        e('s_add_u32 %s, %s, %s' % (s(T2), s(T2), s(sR)))
        e('s_mul_i32 %s, %s, %d' % (s(T2), s(T2), KPS))
        e('s_lshr_b32 %s, %s, 1' % (s(T3), s(sW)))
        e('s_mul_i32 %s, %s, 1680' % (s(T3), s(T3)))
        e('s_add_u32 %s, %s, %s' % (s(T2), s(T2), s(T3)))
        e('s_add_u32 %s, %s, %d' % (s(T2), s(T2), KP))
        D = 120
        for ks in range(4):
            k.wait(lg=hs[ks])
            for ft in range(3):
                e('v_mfma_f32_16x16x32_bf16 %s, %s, %s, %s' % (v(D + 4 * ft, 4), v(KF + 16 * ks + 4 * ft, 4),
                                                              v(KF + 16 * ks + 12, 4), '0' if ks == 0 else v(D + 4 * ft, 4)))
        self.pack(132, D, 6)
        for ft in range(3):
            self.st(v(132 + 2 * ft, 2), 117 if ft < 2 else 118, WS, T2, 32 * ft, n=2)
        e('s_lshl_b32 %s, %s, 7' % (s(T2), s(sC)))
        e('s_lshl2_add_u32 %s, %s, %s' % (s(T2), s(sR), s(T2)))
        e('s_add_u32 %s, %s, %d' % (s(T2), s(T2), F_KV))
        k.wait_all()
        self.barrier()
        self.flag(T2, tmp=112)
        self.stamp('kv flag')
        self.wo_dma(0, 12)
        k.c('qkv projection, tile 3, then the feature map of q')
        items = [(v(ACC + 48, 16), ks == 0, vL16, L_Y + ks * 1024, a(4 * ks, 4), None) for ks in range(40)]
        self.gemm_lds(M32, items, BUF, 8, 4)
        self.softmax(ACC + 40, E, 152, TM)
        self.stamp('q done')

    def mv_table(self):
        k = self.k
        e = k.e
        k.c('gate / shift / scale vectors for this workgroup\'s 80 output columns -> LDS')
        e('s_mul_i32 %s, %s, 80' % (s(T6), s(sC2)))
        e('s_lshr_b32 %s, %s, 6' % (s(T2), s(T6)))
        e('s_lshl_b32 %s, %s, 4' % (s(T2), s(T2)))
        e('s_add_u32 %s, %s, %d' % (s(T2), s(T2), F_MOD2 + 20 * 16))
        e('s_add_u32 %s, %s, 160' % (s(T3), s(T2)))
        e('s_add_u32 %s, %s, 320' % (s(T4), s(T2)))
        e('s_add_u32 %s, %s, 480' % (s(T5), s(T2)))
        self.poll([(8, T2), (8, T3), (8, T4), (8, T5)])
        e('v_min_u32 v112, 19, %s' % v(vL))
        e('v_lshlrev_b32 v112, 4, v112')
        e('s_mul_i32 %s, %s, 2560' % (s(T2), s(sW)))
        e('s_lshl2_add_u32 %s, %s, %s' % (s(T2), s(T6), s(T2)))
        e('s_add_u32 %s, %s, %d' % (s(T2), s(T2), MODP + 2 * 2560))
        for kq in range(4):
            h = self.ld(v(116 + 4 * kq, 4), 112, WS, T2, 0, sc1=True)
            if kq < 3:
                e('s_add_u32 %s, %s, 15360' % (s(T2), s(T2)))
        e('s_cmp_eq_u32 %s, 2' % s(sW))
        e('s_cselect_b32 %s, 1.0, 0' % s(T2))
        e('v_mov_b32 v114, %s' % s(T2))
        e('s_mul_i32 %s, %s, 320' % (s(T2), s(sW)))
        e('s_add_u32 %s, %s, %d' % (s(T2), s(T2), L_MV))
        e('v_add_u32 v113, %s, v112' % s(T2))
        e('v_mov_b32 v136, 0')
        e('v_lshlrev_b32 v137, 2, %s' % v(vL))
        e('v_and_b32 v137, 127, v137')
        e('v_add_u32 v137, %d, v137' % L_KVZ)
        self.dsw(137, v(136), 0, n=1)
        k.wait(vm=h)
        self.round_mod(132, 116, 114)
        self.dsw(113, v(132, 4))

    def attn_out(self):
        k = self.k
        e = k.e
        PHIQ = 152
        G = 184
        k.c('sum the 16 partial kv blocks of this head pair')
        e('v_lshlrev_b32 v112, 4, v0')
        e('v_add_u32 v113, %d, v112' % L_KVT)
        e('s_mul_i32 %s, %s, %d' % (s(T4), s(sC), 16 * KPS))
        e('s_add_u32 %s, %s, %d' % (s(T4), s(T4), KP))
        e('s_mov_b32 %s, 0x00003f80\ns_mov_b32 %s, 0x3f800000' % (s(T5), s(T6)))
        k.c('operand addresses: row i -> (head, output index), masked lanes read zeros')
        e('v_bfe_u32 v114, %s, 3, 2' % v(vL))
        e('v_and_b32 v115, 3, %s' % v(vL))
        e('v_lshl_add_u32 v114, v114, 2, v115')
        e('v_bfe_u32 v115, %s, 2, 1' % v(vL))
        e('v_lshrrev_b32 v116, 5, %s' % v(vL))
        e('v_lshl_add_u32 v117, v115, 2, v114')
        e('v_mul_u32_u24 v118, 1680, v116')
        e('v_add_u32 v118, %d, v118' % L_KVT)
        e('v_mul_u32_u24 v117, 80, v117')
        e('v_add_u32 v117, v117, v118')
        e('v_mov_b32 v119, %d' % L_KVZ)
        e('v_cmp_eq_u32 %s, v115, v116' % s(T2, 2))
        e('v_cndmask_b32 v117, v119, v117, %s' % s(T2, 2))
        e('v_xor_b32 v120, 1, v115')
        e('v_lshl_add_u32 v120, v120, 4, v114')
        e('v_cmp_eq_u32 vcc, 4, v114')
        e('v_cndmask_b32 v120, v120, 20, vcc')
        e('v_mul_u32_u24 v120, 80, v120')
        e('v_add_u32 v120, v120, v118')
        e('v_cmp_ge_u32 vcc, 4, v114')
        e('s_and_b64 vcc, vcc, %s' % s(T2, 2))
        e('v_cndmask_b32 v118, v119, v120, vcc')
        k.c('store offsets of o')
        e('v_bfe_u32 v119, %s, 4, 1' % v(vL))
        e('v_mul_u32_u24 v119, 20480, v119')
        e('v_and_b32 v120, 15, %s' % v(vL))
        e('v_lshl_add_u32 v119, v120, 4, v119')
        e('v_lshl_add_u32 v121, v116, 3, v119')
        e('v_mul_u32_u24 v120, 768, v116')
        e('v_add_u32 v120, v120, v119')
        e('s_lshl_b32 %s, %s, 7' % (s(T2), s(sC)))
        e('s_add_u32 %s, %s, %d' % (s(T2), s(T2), F_KV))
        self.poll([(16, T2)])
        self.stamp('kv seen')
        hs = []
        for r in range(16):
            hs.append(self.ld(v(G + 4 * r, 4), 112, WS, T4, KPS if r & 1 else 0, sc1=True))
            if r & 1 and r < 15:
                e('s_add_u32 %s, %s, %d' % (s(T4), s(T4), 2 * KPS))
        e('s_lshl2_add_u32 %s, %s, %s' % (s(T2), s(sR), s(sW)))
        e('s_mul_i32 %s, %s, 40960' % (s(T2), s(T2)))
        e('s_mul_i32 %s, %s, 1280' % (s(T3), s(sC)))
        e('s_add_u32 %s, %s, %s' % (s(T2), s(T2), s(T3)))
        e('s_add_u32 %s, %s, %d' % (s(T2), s(T2), OF))
        SUM = 124
        for r in range(16):
            k.wait(vm=hs[r])
            for i in range(4):
                for hh in range(2):
                    d = v(SUM + 2 * i + hh)
                    e('v_dot2_f32_bf16 %s, %s, %s, %s' % (d, v(G + 4 * r + i), s(T5 + hh), d if r else '0'))
        self.pack(132, SUM, 4)
        self.dsw(113, v(132, 4))
        self.barrier()
        hs = []
        for st in range(5):
            self.dsr(v(G + 8 * st, 4), 117, 16 * st)
            hs.append(self.dsr(v(G + 8 * st + 4, 4), 118, 16 * st))
        for st in range(5):
            k.wait(lg=hs[st])
            for ot in range(2):
                e('v_mfma_f32_32x32x16_bf16 %s, %s, %s, %s' % (v(16 + 16 * ot, 16), v(G + 8 * st + 4 * ot, 4),
                                                              v(PHIQ + 4 * st, 4), v(16 + 16 * ot, 16) if st else '0'))
        e('v_add_f32 v36, 0x358637bd, v36')
        e('v_rcp_f32 v36, v36')
        for i in range(10):
            e('v_pk_mul_f32 %s, %s, v[36:37] op_sel_hi:[1,0]' % (v(16 + 2 * i, 2), v(16 + 2 * i, 2)))
        self.pack(48, 16, 10)
        self.st(v(48, 4), 120, WS, T2, 0)
        self.st(v(52, 4), 120, WS, T2, 256)
        self.st(v(56, 2), 121, WS, T2, 512, n=2)
        e('s_lshl_b32 %s, %s, 7' % (s(T2), s(sR)))
        e('s_lshl2_add_u32 %s, %s, %s' % (s(T2), s(sC), s(T2)))
        e('s_add_u32 %s, %s, %d' % (s(T2), s(T2), F_O))
        k.wait_all()
        self.barrier()
        self.flag(T2, tmp=112)
        self.stamp('o flag')

    def lane_rowseg(self, va, vb, t):
        e = self.k.e
        e('v_and_b32 %s, 15, %s' % (v(va), v(vL)))
        e('v_mul_u32_u24 %s, 1280, %s' % (v(va), v(va)))
        e('v_lshrrev_b32 %s, 4, %s' % (v(t), v(vL)))
        e('v_mul_u32_u24 %s, 40, %s' % (v(vb), v(t)))
        e('v_add_u32 %s, %s, %s' % (v(vb), v(vb), v(va)))
        e('v_and_b32 %s, 1, %s' % (v(t), v(t)))
        e('v_lshl_add_u32 %s, %s, 3, %s' % (v(va), v(t), v(vb)))
        e('v_xor_b32 %s, 1, %s' % (v(t), v(t)))
        e('v_lshl_add_u32 %s, %s, 5, %s' % (v(vb), v(t), v(vb)))

    def mv_addr(self, va, vb, t):
        e = self.k.e
        e('v_lshrrev_b32 %s, 4, %s' % (v(t), v(vL)))
        e('v_mul_u32_u24 %s, 80, %s' % (v(vb), v(t)))
        e('v_add_u32 %s, %d, %s' % (v(vb), L_MV, v(vb)))
        e('v_and_b32 %s, 1, %s' % (v(t), v(t)))
        e('v_lshl_add_u32 %s, %s, 4, %s' % (v(va), v(t), v(vb)))
        e('v_xor_b32 %s, 1, %s' % (v(t), v(t)))
        e('v_lshl_add_u32 %s, %s, 6, %s' % (v(vb), v(t), v(vb)))

    def mv_read(self, dst, vec, va, vb):
        for t in range(5):
            h = self.dsr(v(dst + 4 * t, 4), va if t < 4 else vb, 320 * vec + (16 * t if t < 4 else 0))
        return h

    def ring_dma(self, ks0):
        k = self.k
        e = k.e
        addrs = [ring_addr((ks0 + w) % 20) for w in range(4)]
        if all(addrs[w] == addrs[0] + 7168 * w for w in range(4)):
            e('s_mul_i32 %s, %s, 7168' % (s(T3), s(sW)))
            e('s_add_u32 m0, %s, %d' % (s(T3), addrs[0]))
        else:
            e('s_mul_i32 %s, %s, 7168' % (s(T3), s(sW)))
            e('s_add_u32 %s, %s, %d' % (s(T3), s(T3), addrs[0]))
            assert all(addrs[w] == addrs[0] + 7168 * w for w in range(3))
            e('s_cmp_eq_u32 %s, 3' % s(sW))
            e('s_cselect_b32 m0, %d, %s' % (addrs[3], s(T3)))
        e('s_add_u32 %s, %s, %d' % (s(T2), s(sT0), ks0 * 108 * 1024))
        for j in range(7):
            h = self.dma(vL16, WS, T2, 1024 * (j & 3), sc1=True)
            if j == 3:
                e('s_add_u32 %s, %s, 4096' % (s(T2), s(T2)))
                e('s_add_u32 m0, m0, 4096')
        return h

    def p2(self):
        k = self.k
        e = k.e
        ACC, BUF = 16, 80
        k.c('residual input for this lane: 20 columns of one token')
        self.lane_rowseg(46, 47, 112)
        e('s_lshl2_add_u32 %s, %s, %s' % (s(T2), s(sR2), s(sW)))
        e('s_mul_i32 %s, %s, %d' % (s(sXOFF), s(T2), 16 * 1280))
        e('s_mul_i32 %s, %s, 160' % (s(T3), s(sC2)))
        e('s_add_u32 %s, %s, %s' % (s(sXOFF), s(sXOFF), s(T3)))
        self.ld(v(36, 4), 46, XS, sXOFF, 0)
        self.ld(v(40, 4), 46, XS, sXOFF, 16)
        h_x = self.ld(v(44, 2), 47, XS, sXOFF, 0, n=2)
        e('s_mul_i32 %s, %s, 20480' % (s(T4), s(T2)))
        e('s_add_u32 %s, %s, %d' % (s(T4), s(T4), OF))
        e('s_mul_i32 %s, %s, 27' % (s(sT0), s(sC)))
        e('s_lshr_b32 %s, %s, 2' % (s(sT0), s(sT0)))
        e('s_mul_i32 %s, %s, 108' % (s(T3), s(sW)))
        e('s_add_u32 %s, %s, %s' % (s(sT0), s(sT0), s(T3)))
        e('s_lshl_b32 %s, %s, 10' % (s(sT0), s(sT0)))
        e('s_add_u32 %s, %s, %d' % (s(sT0), s(sT0), W13F))
        e('v_add_u32 %s, %d, %s' % (v(vA0), L_WO, v(vL16)))
        e('v_add_u32 %s, %d, %s' % (v(vA1), L_WO + 65536, v(vL16)))
        self.mv_addr(46, 47, 112)
        self.mv_read(112, 0, 46, 47)
        self.mv_read(132, 2, 46, 47)
        self.mv_read(152, 1, 46, 47)
        e('s_lshr_b32 %s, %s, 1' % (s(T2), s(sR2)))
        e('s_lshl_b32 %s, %s, 7' % (s(T2), s(T2)))
        e('s_add_u32 %s, %s, %d' % (s(T2), s(T2), F_O))
        self.poll([(16, T2)])
        self.stamp('o seen')
        h_a = []
        for ks in range(20):
            h_a.append(self.ld(a(4 * ks, 4), vL16, WS, T4, 1024 * (ks & 3), sc1=True))
            if ks & 3 == 3 and ks < 19:
                e('s_add_u32 %s, %s, 4096' % (s(T4), s(T4)))
        self.ring_dma(0)
        k.wait(vm=h_x)
        self.unpack(48, 36, 10)
        k.c('output projection')
        items = []
        for ks in range(20):
            for t in range(5):
                n = 5 * ks + t
                items.append((v(ACC + 4 * t, 4), ks == 0, vA0 if n < 64 else vA1, (n % 64) * 1024, a(4 * ks, 4), h_a[ks]))
        self.gemm_lds('v_mfma_f32_16x16x32_bf16', items, BUF, 8, 6)
        self.stamp('p2 done')
        k.c('x1 = x + ga * attn, partial row statistics over 80 columns')
        X = 48
        e('v_and_b32 v176, 15, %s' % v(vL))
        e('v_lshlrev_b32 v176, 4, v176')
        e('v_lshrrev_b32 v177, 4, %s' % v(vL))
        e('v_lshl_add_u32 v178, v177, 8, v176')
        e('s_lshl2_add_u32 %s, %s, %s' % (s(T4), s(sR2), s(sW)))
        e('s_lshl_b32 %s, %s, 11' % (s(T4), s(T4)))
        e('s_add_u32 %s, %s, %d' % (s(T4), s(T4), ST))
        e('s_lshl_b32 %s, %s, 8' % (s(T5), s(sC2)))
        e('s_add_u32 %s, %s, %s' % (s(T5), s(T5), s(T4)))
        for i in range(10):
            e('v_pk_fma_f32 %s, %s, %s, %s' % (v(X + 2 * i, 2), v(ACC + 2 * i, 2), v(112 + 2 * i, 2), v(X + 2 * i, 2)))
        self.pack(X1P, X, 10)
        self.unpack(X, X1P, 10)
        self.pksum(68, X, 10)
        self.xsum(68, 70, (16, 32))
        e('v_mul_f32 v72, 0x3c4ccccd, v68')
        for i in range(10):
            e('v_pk_add_f32 %s, %s, v[72:73] op_sel_hi:[1,0] neg_lo:[0,1] neg_hi:[0,1]' % (v(16 + 2 * i, 2), v(X + 2 * i, 2)))
        e('v_pk_mul_f32 v[68:69], v[16:17], v[16:17]')
        for i in range(1, 10):
            e('v_pk_fma_f32 v[68:69], %s, %s, v[68:69]' % (v(16 + 2 * i, 2), v(16 + 2 * i, 2)))
        e('v_add_f32 v74, v68, v69')
        self.xsum(74, 70, (16, 32))
        e('v_mov_b32 v73, %s' % s(TAG))
        e('v_mov_b32 v75, %s' % s(TAG))
        e('s_mov_b64 exec, 0xffff')
        self.st('v[72:75]', 176, WS, T5)
        e('s_mov_b64 exec, -1')
        self.barrier()
        self.ring_dma(4)
        self.ring_dma(8)
        k.c('collect the eight partial statistics (each 8-byte half carries the launch tag)')
        top, done = k.newlabel('st'), k.newlabel('std')
        e('s_mov_b32 %s, %d' % (s(sCNT), POLL_LIMIT))
        k.label(top)
        self.ld(v(16, 4), 178, WS, T4, 0, sc1=True)
        self.ld(v(20, 4), 178, WS, T4, 1024, sc1=True)
        k.wait_all(vm=True, lg=False, force=True)
        e('v_xor_b32 v24, %s, v17' % s(TAG))
        e('v_xor_b32 v25, %s, v19' % s(TAG))
        e('v_xor_b32 v26, %s, v21' % s(TAG))
        e('v_xor_b32 v27, %s, v23' % s(TAG))
        e('v_or3_b32 v24, v24, v25, v26')
        e('v_or_b32 v24, v24, v27')
        e('v_cmp_ne_u32 vcc, 0, v24')
        e('s_cmp_eq_u64 vcc, 0')
        e('s_cbranch_scc1 %s' % done)
        e('s_sub_u32 %s, %s, 1' % (s(sCNT), s(sCNT)))
        e('s_cbranch_scc0 %s' % top)
        k.label(done)
        self.stamp('stats seen')
        e('v_add_f32 v24, v16, v20')
        self.xsum(24, 26, (16, 32))
        e('v_mul_f32 v24, 0xbe000000, v24')
        e('v_add_f32 v16, v16, v24')
        e('v_add_f32 v20, v20, v24')
        e('v_mul_f32 v16, v16, v16')
        e('v_fmac_f32 v16, v20, v20')
        e('v_add_f32 v18, v18, v22')
        e('v_fmac_f32 v18, 0x42a00000, v16')
        self.xsum(18, 26, (16, 32))
        e('v_mov_b32 v19, 0x3727c5ac')
        e('v_fmac_f32 v19, 0x3acccccd, v18')
        e('v_rsq_f32 v18, v19')
        for i in range(10):
            e('v_pk_add_f32 %s, %s, v[24:25] op_sel_hi:[1,0]' % (v(X + 2 * i, 2), v(X + 2 * i, 2)))
        for i in range(10):
            e('v_pk_mul_f32 %s, %s, v[18:19] op_sel_hi:[1,0]' % (v(X + 2 * i, 2), v(X + 2 * i, 2)))
        for i in range(10):
            e('v_pk_fma_f32 %s, %s, %s, %s' % (v(X + 2 * i, 2), v(X + 2 * i, 2), v(132 + 2 * i, 2), v(152 + 2 * i, 2)))
        self.pack(28, X, 10)
        e('v_lshrrev_b32 v16, 1, v177')
        e('v_mul_u32_u24 v16, 2560, v16')
        e('v_add_u32 v16, v16, v176')
        e('v_and_b32 v17, 1, v177')
        e('v_lshl_add_u32 v20, v17, 3, v16')
        e('v_mul_u32_u24 v17, 1536, v17')
        e('v_add_u32 v16, v16, v17')
        e('s_lshr_b32 %s, %s, 1' % (s(T2), s(sW)))
        e('s_lshl1_add_u32 %s, %s, %s' % (s(T2), s(sR2), s(T2)))
        e('s_mul_i32 %s, %s, 40960' % (s(T2), s(T2)))
        e('s_mul_i32 %s, %s, 5120' % (s(T3), s(sC2)))
        e('s_add_u32 %s, %s, %s' % (s(T2), s(T2), s(T3)))
        e('s_and_b32 %s, %s, 1' % (s(T3), s(sW)))
        e('s_lshl_b32 %s, %s, 8' % (s(T3), s(T3)))
        e('s_add_u32 %s, %s, %s' % (s(T2), s(T2), s(T3)))
        e('s_add_u32 %s, %s, %d' % (s(T2), s(T2), H2F))
        self.st(v(28, 4), 16, WS, T2, 0)
        self.st(v(32, 4), 16, WS, T2, 512)
        self.st(v(36, 2), 20, WS, T2, 1024, n=2)
        e('s_lshr_b32 %s, %s, 1' % (s(T2), s(sR2)))
        e('s_lshl_b32 %s, %s, 5' % (s(T2), s(T2)))
        e('s_and_b32 %s, %s, 1' % (s(T3), s(sR2)))
        e('s_lshl3_add_u32 %s, %s, %s' % (s(T3), s(T3), s(sC2)))
        e('s_add_u32 %s, %s, %s' % (s(T2), s(T2), s(T3)))
        e('s_lshl2_add_u32 %s, %s, %d' % (s(T2), s(T2), F_H2))
        k.wait_all()
        self.barrier()
        self.flag(T2, tmp=40)
        self.stamp('h2 flag')

    def w2reg(self, n):
        return a(4 * n, 4) if n < 64 else v(232 + 4 * (n - 64), 4)

    def p3(self):
        k = self.k
        e = k.e
        ACC, BUF = 16, 128
        self.ring_dma(12)
        h_ring = self.ring_dma(16)
        e('s_lshl2_add_u32 %s, %s, %s' % (s(T4), s(sR), s(sW)))
        e('s_mul_i32 %s, %s, 40960' % (s(T4), s(T4)))
        e('s_add_u32 %s, %s, %d' % (s(T4), s(T4), H2F))
        e('v_add_u32 %s, 61440, %s' % (v(vA0), v(vL16)))
        e('v_add_u32 %s, %d, %s' % (v(vA1), 61440 + 9 * 7168, v(vL16)))
        k.c('w2 fragment addresses: wave w owns k-steps start..start+13')
        e('s_mul_i32 %s, %s, 14' % (s(T5), s(sW)))
        e('s_cmp_eq_u32 %s, 3' % s(sW))
        e('s_cselect_b32 %s, 41, %s' % (s(sKQ), s(T5)))
        e('s_mul_i32 %s, %s, 54' % (s(T5), s(sC2)))
        e('s_add_u32 %s, %s, %s' % (s(T5), s(T5), s(sKQ)))
        e('s_mul_i32 %s, %s, 5120' % (s(T5), s(T5)))
        e('s_add_u32 %s, %s, %d' % (s(sCC), s(T5), W2F))
        e('s_lshl_b32 %s, %s, 7' % (s(T2), s(sR)))
        e('s_add_u32 %s, %s, %d' % (s(T2), s(T2), F_H2))
        self.poll([(16, T2)])
        self.stamp('h2 seen')
        h_a = []
        for ks in range(40):
            h_a.append(self.ld(a(4 * ks, 4), vL16, WS, T4, 1024 * (ks & 3), sc1=True))
            if ks & 3 == 3 and ks < 39:
                e('s_add_u32 %s, %s, 4096' % (s(T4), s(T4)))
        k.wait(vm=h_ring)
        self.barrier()
        self.stamp('p3 start')
        k.c('gate / up projection')
        items = []
        for ks in range(40):
            slot = ks % 20
            for t in range(7):
                if slot < 7:
                    base, off = vL16, slot * 7168
                elif slot < 16:
                    base, off = vA0, (slot - 7) * 7168
                else:
                    base, off = vA1, (slot - 16) * 7168
                items.append((v(ACC + 16 * t, 16), ks == 0, base, off + 1024 * t, a(4 * ks, 4), h_a[ks]))
        grp = {}
        order = list(range(40, 70)) + list(range(40))
        self.w2pos = 0
        self.h_w2 = {}

        def w2_load(maxn):
            if self.w2pos >= len(order):
                return
            n = order[self.w2pos]
            if n < 40 and n > maxn:
                return
            self.w2pos += 1
            if n >= 65:
                e('s_add_u32 %s, %s, %d' % (s(T5), s(sCC), 65 * 1024))
                e('s_cmp_lt_u32 %s, 2' % s(sW))
                e('s_cselect_b32 %s, %s, %s' % (s(T5), s(T5), s(sBIG)))
                if n - 65 == 4:
                    e('s_add_u32 %s, %s, 4096' % (s(T5), s(T5)))
                imm = 1024 * ((n - 65) & 3)
            else:
                if n & 3 == 0:
                    e('s_add_u32 %s, %s, %d' % (s(T5), s(sCC), n * 1024))
                imm = 1024 * (n & 3)
            self.h_w2[n] = self.ld(self.w2reg(n), vL16, WS, T5, imm, sc1=True)

        def sync(waitg, issueg):
            def f():
                if waitg is not None:
                    k.wait(vm=grp[waitg])
                e('s_barrier')
                if issueg is not None:
                    grp[issueg] = self.ring_dma(20 + 4 * issueg)
            return f
        hooks = {}
        for ks, (wg, ig) in {3: (None, 0), 7: (None, 1), 11: (None, 2), 15: (None, 3), 18: (0, None),
                             22: (1, 4), 26: (2, None), 30: (3, None), 34: (4, None)}.items():
            hooks[7 * ks + 6] = sync(wg, ig)
        for ks in range(23, 40):
            for t in (0, 2, 3, 5):
                hooks[7 * ks + t] = (lambda kk: (lambda: w2_load(kk - 1)))(ks)
        self.gemm_lds('v_mfma_f32_32x32x16_bf16', items, BUF, 8, 4, hooks)
        while self.w2pos < len(order):
            w2_load(39)
        self.stamp('p3 done')
        k.c('hh = silu(gate) * up')
        e('v_bfe_u32 v160, %s, 4, 1' % v(vL))
        e('v_mul_u32_u24 v160, 55296, v160')
        e('v_and_b32 v161, 15, %s' % v(vL))
        e('v_lshl_add_u32 v160, v161, 4, v160')
        e('v_lshrrev_b32 v161, 5, %s' % v(vL))
        e('v_lshl_add_u32 v160, v161, 8, v160')
        e('s_lshl2_add_u32 %s, %s, %s' % (s(T2), s(sR), s(sW)))
        e('s_mul_i32 %s, %s, %d' % (s(T2), s(T2), 2 * 55296))
        e('s_mul_i32 %s, %s, 27' % (s(T3), s(sC)))
        e('s_lshr_b32 %s, %s, 2' % (s(T3), s(T3)))
        e('s_lshl_b32 %s, %s, 9' % (s(T3), s(T3)))
        e('s_add_u32 %s, %s, %s' % (s(T2), s(T2), s(T3)))
        e('s_add_u32 %s, %s, %d' % (s(T2), s(T2), HHF))
        for t in range(7):
            g, u = ACC + 16 * t, ACC + 16 * t + 8
            tm = 164 + 8 * (t & 1)
            o = 180 + 4 * t
            for i in range(4):
                e('v_pk_mul_f32 %s, %s, %s neg_lo:[1,0] neg_hi:[1,0]' % (v(tm + 2 * i, 2), v(g + 2 * i, 2), s(LOG2E, 2)))
            for i in range(8):
                e('v_exp_f32 %s, %s' % (v(tm + i), v(tm + i)))
            for i in range(4):
                e('v_pk_add_f32 %s, %s, 1.0 op_sel_hi:[1,0]' % (v(tm + 2 * i, 2), v(tm + 2 * i, 2)))
            for i in range(8):
                e('v_rcp_f32 %s, %s' % (v(tm + i), v(tm + i)))
            for i in range(4):
                e('v_pk_mul_f32 %s, %s, %s' % (v(g + 2 * i, 2), v(g + 2 * i, 2), v(tm + 2 * i, 2)))
            for i in range(4):
                e('v_pk_mul_f32 %s, %s, %s' % (v(g + 2 * i, 2), v(g + 2 * i, 2), v(u + 2 * i, 2)))
            self.pack(o, g, 4)
            self.st(v(o, 4), 160, WS, T2, 512 * t)
        e('s_lshl_b32 %s, %s, 7' % (s(T2), s(sR)))
        e('s_lshl2_add_u32 %s, %s, %s' % (s(T2), s(sC), s(T2)))
        e('s_add_u32 %s, %s, %d' % (s(T2), s(T2), F_HH))
        k.wait_all()
        self.barrier()
        self.flag(T2, tmp=161)
        self.stamp('hh flag')

    def p4(self):
        k = self.k
        e = k.e
        ACC, AB, NB = 16, 96, 28
        k.c('down projection: each wave owns a quarter of K for all 64 x 80 outputs')
        for jj in range(4):
            e('s_add_u32 %s, %s, %d' % (s(T2), s(sW), jj))
            e('s_and_b32 %s, %s, 3' % (s(T2), s(T2)))
            e('s_lshl2_add_u32 %s, %s, %s' % (s(T2), s(sR2), s(T2)))
            e('s_mul_i32 %s, %s, 54' % (s(T2), s(T2)))
            e('s_add_u32 %s, %s, %s' % (s(T2), s(T2), s(sKQ)))
            e('s_lshl_b32 %s, %s, 10' % (s(T2), s(T2)))
            e('s_add_u32 %s, %s, %d' % (s(T4 + jj), s(T2), HHF))
        self.lane_rowseg(208, 209, 210)
        self.mv_addr(210, 211, 212)
        e('s_lshr_b32 %s, %s, 1' % (s(T2), s(sR2)))
        e('s_lshl_b32 %s, %s, 7' % (s(T2), s(T2)))
        e('s_add_u32 %s, %s, %d' % (s(T2), s(T2), F_HH))
        self.poll([(16, T2)], t=216)
        self.stamp('hh seen')
        hs = {}

        def issue(i):
            kk, jj = divmod(i, 4)
            if kk >= 14:
                return
            if kk and kk & 3 == 0:
                e('s_add_u32 %s, %s, 4096' % (s(T4 + jj), s(T4 + jj)))
            if kk == 13:
                e('s_cmp_lt_u32 %s, 2' % s(sW))
                e('s_cselect_b32 %s, %s, %s' % (s(T4 + jj), s(T4 + jj), s(sBIG)))
            hs[i] = self.ld(v(AB + 4 * (i % NB), 4), vL16, WS, T4 + jj, 1024 * (kk & 3), sc1=True)
        for i in range(NB):
            issue(i)
        for i in range(56):
            kk, jj = divmod(i, 4)
            k.wait(vm=hs[i])
            for t in range(5):
                acc = v(ACC + 20 * jj + 4 * t, 4)
                e('v_mfma_f32_16x16x32_bf16 %s, %s, %s, %s' % (acc, self.w2reg(5 * kk + t), v(AB + 4 * (i % NB), 4), acc if kk else '0'))
            issue(i + NB)
        self.stamp('p4 done')
        k.c('reduce the four K quarters through LDS: wave w keeps token block w')
        for jj in range(1, 4):
            e('s_add_u32 %s, %s, %d' % (s(T2), s(sW), jj))
            e('s_and_b32 %s, %s, 3' % (s(T2), s(T2)))
            e('s_mul_i32 %s, %s, 15360' % (s(T2), s(T2)))
            e('s_add_u32 %s, %s, %d' % (s(T2), s(T2), L_RED + (jj - 1) * 5120))
            e('v_add_u32 %s, %s, %s' % (v(212 + jj), s(T2), v(vL16)))
        h_gb = self.mv_read(96, 3, 210, 211)
        for jj in range(1, 4):
            for t in range(5):
                self.dsw(212 + jj, v(ACC + 20 * jj + 4 * t, 4), 1024 * t)
        e('s_mul_i32 %s, %s, 15360' % (s(T2), s(sW)))
        e('s_add_u32 %s, %s, %d' % (s(T2), s(T2), L_RED))
        e('v_add_u32 v212, %s, %s' % (s(T2), v(vL16)))
        self.unpack(116, X1P, 10)
        self.barrier()
        hs = []
        for jj in range(3):
            for t in range(5):
                h = self.dsr(v(136 + 20 * jj + 4 * t, 4), 212, 5120 * jj + 1024 * t)
            hs.append(h)
        for jj in range(3):
            k.wait(lg=hs[jj])
            for i in range(10):
                e('v_pk_add_f32 %s, %s, %s' % (v(ACC + 2 * i, 2), v(ACC + 2 * i, 2), v(136 + 20 * jj + 2 * i, 2)))
        for i in range(10):
            e('v_pk_fma_f32 %s, %s, %s, %s' % (v(ACC + 2 * i, 2), v(ACC + 2 * i, 2), v(96 + 2 * i, 2), v(116 + 2 * i, 2)))
        self.pack(40, ACC, 10)
        self.st(v(40, 4), 208, OUTS, sXOFF, 0, sc1=False)
        self.st(v(44, 4), 208, OUTS, sXOFF, 16, sc1=False)
        self.st(v(48, 2), 209, OUTS, sXOFF, 0, sc1=False, n=2)

    def epilogue(self):
        k = self.k
        e = k.e
        k.c('workgroup 0 records the launch tag for the next launch')
        e('s_cmp_eq_u32 s2, 0')
        e('s_cselect_b32 %s, %d, %s' % (s(T2), EPOCH, s(sBIG)))
        self.flag(T2, tmp=52)
        if self.ts:
            k.wait_all()
            self.stamp('end')
            e('s_lshl2_add_u32 %s, s2, %s' % (s(T2), s(sW)))
            e('s_lshl_b32 %s, %s, 8' % (s(T2), s(T2)))
            e('s_add_u32 %s, %s, %d' % (s(T2), s(T2), WS_END - 0x40000))
            e('v_lshlrev_b32 v16, 2, %s' % v(vL))
            self.st(v(vTS), 16, WS, T2, 0, n=1)
        k.label('L_end')
        e('s_endpgm')

    def table(self):
        parts = [(0, None), (0, 1), (1, 2), (2, None)]
        words = []
        for t in range(4):
            for l in range(64):
                G, rho, ci = l >> 4, (l >> 2) & 3, l & 3
                vals = []
                for hf in range(2):
                    for pi in range(2):
                        for st in range(2):
                            for kh in range(2):
                                ee = 32 * st + 8 * G + 4 * kh + rho
                                head = ci & 1
                                slot0 = 16 * t + 8 * hf + 4 * (ci >> 1)
                                part, f0 = divmod(slot0, 20)
                                d = ee - 20 * head
                                if parts[t][pi] == part and 0 <= d < 20:
                                    base = (L_IDENT - L_WPHI) if part == 1 else 800 * head
                                    vals.append(base + 40 * d + 2 * f0)
                                else:
                                    vals.append(L_ZERO - L_WPHI)
                words += [vals[2 * i] | (vals[2 * i + 1] << 16) for i in range(8)]
        return words

    def build(self):
        steps = [self.prologue, self.mod_gemv, self.fold, self.mod_flag, self.relayout_loads, self.ln1_stats,
                 self.make_h, self.p1_loads, self.p1, self.mv_table, self.attn_out, self.p2, self.p3, self.p4]
        for i, f in enumerate(steps):
            if i > self.stop:
                break
            f()
        if self.stop < len(steps) - 1:
            self.k.wait_all(force=True)
        self.epilogue()
        body, nins, nops = self.k.text()
        words = self.table()
        tab = '\n'.join('.long ' + ', '.join('0x%08x' % x for x in words[i:i + 8]) for i in range(0, len(words), 8))
        head = open('cdna_kernels/%s.s.ref' % NAME).read().split('; Override launch')[0]
        src = head
        src += '; One persistent launch, 256 workgroups (one per CU); phases hand data over through d_ws with launch-tagged flags.\n'
        src += '; @launch grid=(256,1,1) block=(256,1,1) lds=%d\n' % LDS_BYTES
        src += '.amdgcn_target "amdgcn-amd-amdhsa--gfx950"\n.text\n.globl %s\n.p2align 8\n.type %s,@function\n%s:\n' % (KN, KN, KN)
        src += body
        src += '.p2align 6\n.type L_table,@object\nL_table:\n' + tab + '\nL_code_end:\n.size L_table, L_code_end-L_table\n'
        src += '''.section .rodata,"a"
.p2align 6
.amdhsa_kernel %s
  .amdhsa_next_free_vgpr 512
  .amdhsa_next_free_sgpr 102
  .amdhsa_accum_offset 256
  .amdhsa_group_segment_fixed_size 0
  .amdhsa_kernarg_size 104
  .amdhsa_user_sgpr_count 2
  .amdhsa_user_sgpr_kernarg_segment_ptr 1
  .amdhsa_system_sgpr_workgroup_id_x 1
  .amdhsa_float_denorm_mode_32 3
.end_amdhsa_kernel
''' % KN
        return src, nins, nops


if __name__ == '__main__':
    import argparse
    ap = argparse.ArgumentParser()
    ap.add_argument('-o', default='k.s')
    ap.add_argument('--stop', type=int, default=99)
    ap.add_argument('--ts', action='store_true')
    ap.add_argument('--map', default='L')
    args = ap.parse_args()
    if args.ts:
        WS_END += 0x40000
    g = Gen(args.stop, args.ts, args.map)
    src, nins, nops = g.build()
    open(args.o, 'w').write(src)
    if args.ts:
        open(args.o + '.ts', 'w').write('\n'.join(g.tsnames))
    print('instructions', nins, 'hazard nops', nops, 'bytes', len(src))
```

```python
from asmlib import Asm, v, a, s
from layout import *


class Base:
    def csel(self, dst, x, y):
        self.k.e('s_mov_b32 %s, %d' % (s(dst), y))
        self.k.e('s_cselect_b32 %s, %d, %s' % (s(dst), x, s(dst)))

    def barrier(self):
        self.k.wait_all(vm=False, lg=True)
        self.k.e('s_barrier')

    def srd(self, r, size):
        self.k.e('s_mov_b32 %s, %d\ns_mov_b32 %s, 0x20000' % (s(r + 2), size, s(r + 3)))

    def coords(self, dr, dc, ncol, C):
        e = self.k.e
        lc = C.bit_length() - 1
        nx = ncol // C
        lx = nx.bit_length() - 1
        e('s_and_b32 %s, s2, 7' % s(T2))
        e('s_lshr_b32 %s, %s, %d' % (s(T3), s(T2), lx))
        e('s_lshl_b32 %s, %s, %d' % (s(T3), s(T3), 5 - lc))
        e('s_lshr_b32 %s, %s, %d' % (s(dr), s(sLOC), lc))
        e('s_add_u32 %s, %s, %s' % (s(dr), s(dr), s(T3)))
        e('s_and_b32 %s, %s, %d' % (s(T2), s(T2), nx - 1))
        e('s_lshl_b32 %s, %s, %d' % (s(T2), s(T2), lc))
        e('s_and_b32 %s, %s, %d' % (s(dc), s(sLOC), C - 1))
        e('s_add_u32 %s, %s, %s' % (s(dc), s(dc), s(T2)))

    def dma(self, vaddr, srd, soff, imm=0, sc1=False):
        return self.k.vm('buffer_load_dwordx4 %s, %s, %s offen%s%s lds' % (
            v(vaddr), s(srd, 4), s(soff), ' offset:%d' % imm if imm else '', ' sc1' if sc1 else ''))

    def ld(self, dst, vaddr, srd, soff, imm=0, sc1=False, n=4):
        op = {4: 'dwordx4', 2: 'dwordx2', 1: 'dword'}[n]
        return self.k.vm('buffer_load_%s %s, %s, %s, %s offen%s%s' % (
            op, dst, v(vaddr), s(srd, 4), s(soff) if soff is not None else '0',
            ' offset:%d' % imm if imm else '', ' sc1' if sc1 else ''))

    def st(self, src, vaddr, srd, soff, imm=0, sc1=True, n=4):
        op = {4: 'dwordx4', 2: 'dwordx2', 1: 'dword'}[n]
        return self.k.vm('buffer_store_%s %s, %s, %s, %s offen%s%s' % (
            op, src, v(vaddr), s(srd, 4), s(soff) if soff is not None else '0',
            ' offset:%d' % imm if imm else '', ' sc1' if sc1 else ''))

    def dsr(self, dst, vaddr, off=0, n=4):
        op = {4: 'ds_read_b128', 2: 'ds_read_b64', 1: 'ds_read_b32'}[n]
        assert 0 <= off < 65536
        return self.k.lg('%s %s, %s%s' % (op, dst, v(vaddr), ' offset:%d' % off if off else ''))

    def dstr(self, dst, vaddr, off=0):
        assert 0 <= off < 65536
        return self.k.lg('ds_read_b64_tr_b16 %s, %s%s' % (dst, v(vaddr), ' offset:%d' % off if off else ''))

    def dsw(self, vaddr, src, off=0, n=4):
        op = {4: 'ds_write_b128', 2: 'ds_write_b64', 1: 'ds_write_b32', 0: 'ds_write_b16'}[n]
        assert 0 <= off < 65536
        return self.k.lg('%s %s, %s%s' % (op, v(vaddr), src, ' offset:%d' % off if off else ''))

    def unpack(self, dst, src, n):
        for i in range(n):
            self.k.e('v_lshlrev_b32 %s, 16, %s' % (v(dst + 2 * i), v(src + i)))
            self.k.e('v_and_b32 %s, 0xffff0000, %s' % (v(dst + 2 * i + 1), v(src + i)))

    def pack(self, dst, src, n):
        for i in range(n):
            self.k.e('v_cvt_pk_bf16_f32 %s, %s, %s' % (v(dst + i), v(src + 2 * i), v(src + 2 * i + 1)))

    def xsum(self, x, t, steps):
        k = self.k
        for b in steps:
            if b == 8:
                k.e('v_add_f32_dpp %s, %s, %s row_ror:8 row_mask:0xf bank_mask:0xf' % (v(x), v(x), v(x)))
            else:
                k.e('v_mov_b32 %s, %s' % (v(t), v(x)))
                k.e('v_permlane%d_swap_b32 %s, %s' % (b, v(x), v(t)))
                k.e('v_add_f32 %s, %s, %s' % (v(x), v(x), v(t)))

    def pksum(self, dst, src, npairs):
        k = self.k
        k.e('v_pk_add_f32 %s, %s, %s' % (v(dst, 2), v(src, 2), v(src + 2, 2)))
        for i in range(2, npairs):
            k.e('v_pk_add_f32 %s, %s, %s' % (v(dst, 2), v(dst, 2), v(src + 2 * i, 2)))
        k.e('v_add_f32 %s, %s, %s' % (v(dst), v(dst), v(dst + 1)))

    def softmax(self, P, E, OUT, t):
        e = self.k.e
        mx, mn, sp, sm = t, t + 2, t + 4, t + 6
        e('v_max3_f32 %s, %s, %s, %s' % (v(mx), v(P), v(P + 1), v(P + 2)))
        e('v_min3_f32 %s, %s, %s, %s' % (v(mn), v(P), v(P + 1), v(P + 2)))
        for i in range(3, 19, 2):
            e('v_max3_f32 %s, %s, %s, %s' % (v(mx), v(mx), v(P + i), v(P + i + 1)))
            e('v_min3_f32 %s, %s, %s, %s' % (v(mn), v(mn), v(P + i), v(P + i + 1)))
        e('v_max_f32 %s, %s, %s' % (v(mx), v(mx), v(P + 19)))
        e('v_min_f32 %s, %s, %s' % (v(mn), v(mn), v(P + 19)))
        for i in range(10):
            e('v_pk_add_f32 %s, %s, %s op_sel_hi:[1,0] neg_lo:[0,1] neg_hi:[0,1]' % (v(E + 2 * i, 2), v(P + 2 * i, 2), v(mx, 2)))
            e('v_pk_add_f32 %s, %s, %s op_sel_hi:[1,0] neg_lo:[1,0] neg_hi:[1,0]' % (v(E + 20 + 2 * i, 2), v(P + 2 * i, 2), v(mn, 2)))
        for i in range(20):
            e('v_pk_mul_f32 %s, %s, %s' % (v(E + 2 * i, 2), v(E + 2 * i, 2), s(LOG2E, 2)))
        for i in range(40):
            e('v_exp_f32 %s, %s' % (v(E + i), v(E + i)))
        e('v_pk_add_f32 %s, %s, %s' % (v(sp, 2), v(E, 2), v(E + 2, 2)))
        e('v_pk_add_f32 %s, %s, %s' % (v(sm, 2), v(E + 20, 2), v(E + 22, 2)))
        for i in range(2, 10):
            e('v_pk_add_f32 %s, %s, %s' % (v(sp, 2), v(sp, 2), v(E + 2 * i, 2)))
            e('v_pk_add_f32 %s, %s, %s' % (v(sm, 2), v(sm, 2), v(E + 20 + 2 * i, 2)))
        e('v_add_f32 %s, %s, %s' % (v(sp), v(sp), v(sp + 1)))
        e('v_add_f32 %s, %s, %s' % (v(sm), v(sm), v(sm + 1)))
        e('v_rcp_f32 %s, %s' % (v(sp), v(sp)))
        e('v_rcp_f32 %s, %s' % (v(sm), v(sm)))
        for i in range(20):
            e('v_pk_mul_f32 %s, %s, %s op_sel_hi:[1,0]' % (v(E + 2 * i, 2), v(E + 2 * i, 2), v(sp if i < 10 else sm, 2)))
        self.pack(OUT, E, 20)

    def round_mod(self, dst, p, add):
        e = self.k.e
        for h in range(2):
            e('v_pk_add_f32 %s, %s, %s' % (v(p + 2 * h, 2), v(p + 2 * h, 2), v(p + 4 + 2 * h, 2)))
            e('v_pk_add_f32 %s, %s, %s' % (v(p + 8 + 2 * h, 2), v(p + 8 + 2 * h, 2), v(p + 12 + 2 * h, 2)))
        for h in range(2):
            e('v_pk_add_f32 %s, %s, %s' % (v(p + 2 * h, 2), v(p + 2 * h, 2), v(p + 8 + 2 * h, 2)))
        self.pack(p + 4, p, 2)
        self.unpack(p, p + 4, 2)
        for h in range(2):
            e('v_pk_add_f32 %s, %s, %s op_sel_hi:[1,0]' % (v(p + 2 * h, 2), v(p + 2 * h, 2), v(add, 2)))
        self.pack(p + 4, p, 2)
        self.unpack(dst, p + 4, 2)

    def lane_rowseg(self, va, vb, t):
        e = self.k.e
        e('v_and_b32 %s, 15, %s' % (v(va), v(vL)))
        e('v_mul_u32_u24 %s, 1280, %s' % (v(va), v(va)))
        e('v_lshrrev_b32 %s, 4, %s' % (v(t), v(vL)))
        e('v_mul_u32_u24 %s, 40, %s' % (v(vb), v(t)))
        e('v_add_u32 %s, %s, %s' % (v(vb), v(vb), v(va)))
        e('v_and_b32 %s, 1, %s' % (v(t), v(t)))
        e('v_lshl_add_u32 %s, %s, 3, %s' % (v(va), v(t), v(vb)))
        e('v_xor_b32 %s, 1, %s' % (v(t), v(t)))
        e('v_lshl_add_u32 %s, %s, 5, %s' % (v(vb), v(t), v(vb)))

    def mv_addr(self, va, vb, t):
        e = self.k.e
        e('v_lshrrev_b32 %s, 4, %s' % (v(t), v(vL)))
        e('v_mul_u32_u24 %s, 80, %s' % (v(vb), v(t)))
        e('v_add_u32 %s, %d, %s' % (v(vb), L_MV, v(vb)))
        e('v_and_b32 %s, 1, %s' % (v(t), v(t)))
        e('v_lshl_add_u32 %s, %s, 4, %s' % (v(va), v(t), v(vb)))
        e('v_xor_b32 %s, 1, %s' % (v(t), v(t)))
        e('v_lshl_add_u32 %s, %s, 6, %s' % (v(vb), v(t), v(vb)))

    def mv_read(self, dst, vec, va, vb):
        for t in range(5):
            h = self.dsr(v(dst + 4 * t, 4), va if t < 4 else vb, 320 * vec + (16 * t if t < 4 else 0))
        return h
```

```python
NAME = 'adaLN_cond__linear_kernel_hedgehog__glu_gated_swiglu__prompt'
KN = NAME + '_kernel'

EPOCH = 0
PB0 = 0x10000
MODP = PB0
F_WP = PB0 + 0x10000
F_WO = PB0 + 0x15000
F_KV = PB0 + 0x18000
F_H = PB0 + 0x20000
F_O = PB0 + 0x40000
F_H2 = PB0 + 0x60000
F_HH1 = PB0 + 0x80000
F_HH2 = PB0 + 0xA0000
ST = PB0 + 0xC0000
KP = 0x110000
KPS = 3584
WF = 0x200000
HF = 0x480000
OF = 0x700000
H2F = 0x980000
WOF = 0xC00000
W13A = 0xD00000
W13B = 0xF80000
W2F = 0x1140000
HHF = 0x1360000
TSB = 0x1A20000
WS_END = 0x1A60000
BIG = 0x7F000000

L_Y = 0
L_X = 61440
L_J1 = 0
L_SE = 20480
L_SE2 = 143360
L_FR = 0
L_WPHI = 16384
L_SILU = 43008
L_LNR = 43520
L_SCSH = 44032
L_RS = 61440
L_J1B = 81920
L_STG = 102400
L_SILU2 = 135168
L_KVT = 55296
L_KVZ = L_KVT + 4096
L_MV = L_KVZ + 128
L_WO = 61440
L_RED = 61440
LDS_BYTES = 163840

WS, XS, OUTS, WQ, WM, CS, WP, SE, SL, S2 = 4, 8, 12, 16, 20, 24, 28, 32, 36, 64
TAG = 40
sW, sR, sC, sR2, sC2, sLOC = 42, 43, 44, 45, 46, 47
T0, T1, T2, T3, T4, T5, T6, T7 = 48, 49, 50, 51, 52, 53, 54, 55
XT = [56, 57, 58, 59, 60, 61]
LOG2E = 62
PB = 68
sTB = 76
sAOF, sAOF2, sDM, sDG, sW2, sW2b, sRA, sRB, sFL, sFL2 = 80, 81, 82, 83, 84, 85, 86, 87, 88, 89
U0, U1, U2, U3, U4, U5 = 90, 91, 92, 93, 94, 95
sCNT = 96
sJ1 = 97
sTS = 98
sBIG = 100
sXOFF = 101
sCC, sKQ = 0, 1
sW5K = 3

vTID, vL, vL16, vA0 = 0, 1, 2, 3
X1P = 4
vA1 = 14
vTS = 15

POLL_LIMIT = 400000
```

```python
import ast


def inline(c):
    return -16 <= c <= 64


class X:
    def __init__(self, emit, snames, vnames, consts, stemps):
        self.e = emit
        self.sn = snames
        self.vn = vnames
        self.consts = consts
        self.st = stemps

    def parse(self, text, extra):
        return self.fold(ast.parse(text, mode='eval').body, extra)

    def fold(self, n, ex):
        if isinstance(n, ast.Constant):
            return ('c', int(n.value))
        if isinstance(n, ast.Name):
            for table, kind in ((ex, None), (self.sn, 's'), (self.vn, 'v'), (self.consts, 'c')):
                if n.id in table:
                    return table[n.id] if kind is None else (kind, table[n.id])
            raise KeyError(n.id)
        if isinstance(n, ast.BinOp):
            op = {ast.Add: '+', ast.Sub: '-', ast.Mult: '*', ast.LShift: '<<', ast.RShift: '>>',
                  ast.BitAnd: '&', ast.BitOr: '|', ast.BitXor: '^'}[type(n.op)]
            x, y = self.fold(n.left, ex), self.fold(n.right, ex)
            if x[0] == 'c' and y[0] == 'c':
                return ('c', eval('%d %s %d' % (x[1], op, y[1])))
            if op == '*':
                if x[0] == 'c':
                    x, y = y, x
                if y[0] == 'c' and y[1] > 0 and y[1] & (y[1] - 1) == 0:
                    return x if y[1] == 1 else ('<<', x, ('c', y[1].bit_length() - 1))
            if op == '-' and y[0] == 'c':
                op, y = '+', ('c', -y[1])
            if op == '+':
                terms = self.terms(x) + self.terms(y)
                c = sum(t[1] for t in terms if t[0] == 'c')
                terms = [t for t in terms if t[0] != 'c']
                if c:
                    terms.append(('c', c))
                return terms[0] if len(terms) == 1 else ('sum', terms)
            return (op, x, y)
        if isinstance(n, ast.Call):
            return (n.func.id,) + tuple(self.fold(x, ex) for x in n.args)
        if isinstance(n, ast.Compare):
            op = {ast.Lt: 'lt', ast.LtE: 'le', ast.Gt: 'gt', ast.GtE: 'ge', ast.Eq: 'eq', ast.NotEq: 'ne'}[type(n.ops[0])]
            return ('cmp', op, self.fold(n.left, ex), self.fold(n.comparators[0], ex))
        raise ValueError(ast.dump(n))

    @staticmethod
    def terms(x):
        return list(x[1]) if x[0] == 'sum' else [x]

    def has_v(self, n):
        if n[0] == 'v':
            return True
        if n[0] in 'cs' and len(n[0]) == 1:
            return False
        kids = n[1] if n[0] == 'sum' else [x for x in n[1:] if isinstance(x, tuple)]
        return any(self.has_v(x) for x in kids)

    @staticmethod
    def lit(c):
        return str(c) if inline(c) else '0x%x' % (c & 0xffffffff)

    def opnd(self, o):
        return self.lit(o[1]) if o[0] == 'c' else ('m0' if o[1] == 'm0' else '%s%d' % (o[0], o[1]))

    def sgen(self, n, dst, free):
        if n[0] in ('c', 's'):
            return n
        d = ('s', dst)
        e, O = self.e, self.opnd

        def two(x, y):
            b = self.sgen(y, free[0], free[1:]) if y[0] not in 'cs' or len(y[0]) > 1 else y
            fr = free[1:] if b == ('s', free[0]) else free
            a = self.sgen(x, dst if b != d else fr[0], fr if b != d else fr[1:])
            return a, b
        if n[0] == 'sum':
            terms = sorted(n[1], key=lambda t: (t[0] == 'c', t[0] == '<<' and t[2][1] <= 4, t[0] == 's'))
            if any(t == d for t in terms):
                terms.remove(d)
                terms.insert(0, d)
            acc = self.sgen(terms[0], dst, free)
            for t in terms[1:]:
                if t[0] == '<<' and t[2][0] == 'c' and 1 <= t[2][1] <= 4:
                    x = self.sgen(t[1], free[0], free[1:])
                    e('s_lshl%d_add_u32 %s, %s, %s' % (t[2][1], O(d), O(x), O(acc)))
                else:
                    x = self.sgen(t, free[0], free[1:])
                    e('s_add_u32 %s, %s, %s' % (O(d), O(acc), O(x)))
                acc = d
            return d
        if n[0] == 'sel':
            c = n[1]
            x = self.sgen(n[2], free[0], free[1:])
            y = self.sgen(n[3], free[1], free[2:])
            if x[0] == 'c' and y[0] == 'c' and not inline(x[1]) and not inline(y[1]):
                e('s_mov_b32 s%d, %s' % (free[1], O(y)))
                y = ('s', free[1])
            p = self.sgen(c[2], free[2], free[3:])
            q = self.sgen(c[3], free[3], free[4:])
            e('s_cmp_%s_u32 %s, %s' % ('lg' if c[1] == 'ne' else c[1], O(p), O(q)))
            e('s_cselect_b32 %s, %s, %s' % (O(d), O(x), O(y)))
            return d
        ops = {'-': 's_sub_u32', '*': 's_mul_i32', '<<': 's_lshl_b32', '>>': 's_lshr_b32', '&': 's_and_b32',
               '|': 's_or_b32', '^': 's_xor_b32', 'min': 's_min_u32'}
        a, b = two(n[1], n[2])
        e('%s %s, %s, %s' % (ops[n[0]], O(d), O(a), O(b)))
        return d

    def sx(self, dst, text, **extra):
        n = self.parse(text, extra)
        assert not self.has_v(n), text
        r = self.sgen(n, dst, list(self.st))
        if r != ('s', dst):
            self.e('s_mov_b32 %s, %s' % (self.opnd(('s', dst)), self.opnd(r)))

    def vgen(self, n, dst, free, sfree):
        if n[0] in ('c', 's', 'v'):
            return n
        if not self.has_v(n):
            return self.sgen(n, sfree[0], sfree[1:])
        d = ('v', dst)
        e, O = self.e, self.opnd

        def sub(x, target, fr, sf):
            r = self.vgen(x, target, fr, sf)
            return r, (sf[1:] if r == ('s', sf[0]) else sf)

        def vop3_ok(*ops):
            ss = {o for o in ops if o[0] == 's'}
            return len(ss) <= 1 and all(o[0] != 'c' or inline(o[1]) for o in ops)
        if n[0] == 'sum':
            vt = [t for t in n[1] if self.has_v(t)]
            st = [t for t in n[1] if not self.has_v(t)]
            acc, sf = None, sfree
            if st:
                acc, sf = sub(st[0] if len(st) == 1 else ('sum', st), None, None, sfree)
            vt.sort(key=lambda t: (t != d, t[0] in ('<<', '*')))
            for t in vt:
                tgt = dst if (acc is None or acc[0] != 'v' or acc != d) and not self.uses(n, d) else free[0]
                fr = free if tgt == dst else free[1:]
                if acc is None:
                    acc, _ = sub(t, tgt, fr, sf)
                    continue
                if t[0] == '<<' and t[2][0] == 'c':
                    x, _ = sub(t[1], tgt, fr, sf)
                    if vop3_ok(x, acc):
                        e('v_lshl_add_u32 %s, %s, %d, %s' % (O(d), O(x), t[2][1], O(acc)))
                        acc = d
                        continue
                    e('v_lshlrev_b32 v%d, %d, %s' % (tgt, t[2][1], O(x)))
                    x = ('v', tgt)
                elif t[0] == '*' and t[2][0] == 'c' and inline(t[2][1]):
                    x, _ = sub(t[1], tgt, fr, sf)
                    if vop3_ok(x, acc):
                        e('v_mad_u32_u24 %s, %s, %d, %s' % (O(d), O(x), t[2][1], O(acc)))
                        acc = d
                        continue
                    e('v_mul_u32_u24 v%d, %d, %s' % (tgt, t[2][1], O(x)))
                    x = ('v', tgt)
                else:
                    x, _ = sub(t, tgt, fr, sf)
                e('v_add_u32 %s, %s, %s' % (O(d), O(acc), O(x)))
                acc = d
            return d
        if n[0] == 'sel':
            c = n[1]
            x, sf = sub(n[2], free[0], free[1:], sfree)
            if x[0] != 'v':
                e('v_mov_b32 v%d, %s' % (free[0], O(x)))
                x = ('v', free[0])
            y, sf = sub(n[3], free[1], free[2:], sfree)
            if y[0] == 's' or (y[0] == 'c' and not inline(y[1])):
                e('v_mov_b32 v%d, %s' % (free[1], O(y)))
                y = ('v', free[1])
            if self.has_v(c):
                p, sf = sub(c[2], free[2], free[3:], sfree)
                q, sf = sub(c[3], free[3] if len(free) > 3 else None, free[4:], sf)
                op = c[1]
                if q[0] != 'v':
                    p, q = q, p
                    op = {'lt': 'gt', 'gt': 'lt', 'le': 'ge', 'ge': 'le'}.get(op, op)
                e('v_cmp_%s_u32 vcc, %s, %s' % (op, O(p), O(q)))
            else:
                p = self.sgen(c[2], sfree[0], sfree[2:])
                q = self.sgen(c[3], sfree[1], sfree[2:])
                e('s_cmp_%s_u32 %s, %s' % ('lg' if c[1] == 'ne' else c[1], O(p), O(q)))
                e('s_cselect_b64 vcc, -1, 0')
            e('v_cndmask_b32 %s, %s, %s, vcc' % (O(d), O(y), O(x)))
            return d
        if n[0] == '&' and n[2][0] == 'c' and n[1][0] == '>>' and n[1][2][0] == 'c' and (n[2][1] + 1) & n[2][1] == 0:
            x, _ = sub(n[1][1], dst, free, sfree)
            e('v_bfe_u32 %s, %s, %d, %d' % (O(d), O(x), n[1][2][1], n[2][1].bit_length()))
            return d
        y, sf = sub(n[2], free[0] if free else None, free[1:], sfree)
        fr = free[1:] if free and y == ('v', free[0]) else free
        x, sf = sub(n[1], dst if y != d else fr[0], fr if y != d else fr[1:], sf)
        if n[0] in ('<<', '>>'):
            if x[0] != 'v':
                e('v_mov_b32 %s, %s' % (O(d), O(x)))
                x = d
            e('%s %s, %s, %s' % ('v_lshlrev_b32' if n[0] == '<<' else 'v_lshrrev_b32', O(d), O(y), O(x)))
            return d
        if n[0] == '-':
            if y[0] == 'v':
                e('v_sub_u32 %s, %s, %s' % (O(d), O(x), O(y)))
            else:
                e('v_subrev_u32 %s, %s, %s' % (O(d), O(y), O(x)))
            return d
        ops = {'*': 'v_mul_u32_u24', '&': 'v_and_b32', '|': 'v_or_b32', '^': 'v_xor_b32', 'min': 'v_min_u32'}
        if y[0] != 'v':
            x, y = y, x
        e('%s %s, %s, %s' % (ops[n[0]], O(d), O(x), O(y)))
        return d

    def uses(self, n, reg):
        if n == reg:
            return True
        if n[0] in ('c', 's', 'v'):
            return False
        kids = n[1] if n[0] == 'sum' else [x for x in n[1:] if isinstance(x, tuple)]
        return any(self.uses(x, reg) for x in kids)

    def vx(self, dst, text, tmp=(), **extra):
        n = self.parse(text, extra)
        r = self.vgen(n, dst, list(tmp) + [None] * 8, list(self.st))
        if r != ('v', dst):
            self.e('v_mov_b32 v%d, %s' % (dst, self.opnd(r)))
```

```python
import random, re
M = 0xffffffff
def run(lines, S, V):
    scc = 0; vcc = [0] * 64
    def sv(t):
        return S[t] if t in S else int(t, 0) & M
    def vv(t, l):
        return V[t][l] if t.startswith('v') else sv(t)
    for ln in lines:
        op, rest = ln.split(None, 1); o = [x.strip() for x in rest.split(',')]
        if op.startswith('s_'):
            if op.startswith('s_cmp'):
                a, b = sv(o[0]), sv(o[1]); scc = {'lt': a < b, 'le': a <= b, 'gt': a > b, 'ge': a >= b, 'eq': a == b, 'lg': a != b}[op.split('_')[2]]
            elif op == 's_cselect_b64': vcc = [scc] * 64
            else:
                a = sv(o[1]); b = sv(o[2]) if len(o) > 2 else 0
                m = re.match(r's_lshl(\d)_add_u32', op)
                r = ((a << int(m.group(1))) + b) if m else {'s_mov_b32': a, 's_add_u32': a + b, 's_sub_u32': a - b, 's_mul_i32': a * b, 's_lshl_b32': a << (b & 31),
                     's_lshr_b32': a >> (b & 31), 's_and_b32': a & b, 's_or_b32': a | b, 's_xor_b32': a ^ b, 's_min_u32': min(a, b), 's_cselect_b32': a if scc else b}[op]
                S[o[0]] = r & M
        elif op.startswith('v_cmp'):
            c = op.split('_')[2]
            vcc = [{'lt': a < b, 'le': a <= b, 'gt': a > b, 'ge': a >= b, 'eq': a == b, 'ne': a != b}[c] for a, b in ((vv(o[1], l), vv(o[2], l)) for l in range(64))]
        else:
            out = []
            for l in range(64):
                a = vv(o[1], l); b = vv(o[2], l) if len(o) > 2 else 0; c = vv(o[3], l) if len(o) > 3 and o[3] != 'vcc' else 0
                u = lambda x: x & 0xffffff
                out.append({'v_mov_b32': a, 'v_add_u32': a + b, 'v_sub_u32': a - b, 'v_subrev_u32': b - a, 'v_mul_u32_u24': u(a) * u(b), 'v_mad_u32_u24': u(a) * u(b) + c,
                    'v_lshlrev_b32': b << (a & 31), 'v_lshrrev_b32': b >> (a & 31), 'v_lshl_add_u32': (a << (b & 31)) + c, 'v_and_b32': a & b, 'v_or_b32': a | b, 'v_xor_b32': a ^ b,
                    'v_min_u32': min(a, b), 'v_bfe_u32': (a >> b) & ((1 << c) - 1), 'v_cndmask_b32': b if vcc[l] else a}[op] & M)
            V[o[0]] = out


class U:
    wide = False

    def __init__(self, v):
        self.v = (v.v if isinstance(v, U) else v) & M

    def _b(f):
        return lambda a, b: U(f(a.v, U(b).v))

    def _r(f):
        return lambda a, b: U(f(U(b).v, a.v))

    def _mul(a, b):
        if max(a, b) >= 1 << 24:
            U.wide = True
        return a * b
    __add__ = _b(lambda a, b: a + b); __radd__ = _r(lambda a, b: a + b)
    __sub__ = _b(lambda a, b: a - b); __rsub__ = _r(lambda a, b: a - b)
    __mul__ = _b(_mul); __rmul__ = _r(_mul)
    __lshift__ = _b(lambda a, b: a << b); __rshift__ = _b(lambda a, b: a >> b)
    __and__ = _b(lambda a, b: a & b); __rand__ = _r(lambda a, b: a & b)
    __or__ = _b(lambda a, b: a | b); __ror__ = _r(lambda a, b: a | b)
    __xor__ = _b(lambda a, b: a ^ b); __rxor__ = _r(lambda a, b: a ^ b)
    def __lt__(a, b): return a.v < U(b).v
    def __le__(a, b): return a.v <= U(b).v
    def __gt__(a, b): return a.v > U(b).v
    def __ge__(a, b): return a.v >= U(b).v
    def __eq__(a, b): return a.v == U(b).v
    def __ne__(a, b): return a.v != U(b).v
```

```python
import random
import re
import layout
from asmlib import Asm, v, a, s
from layout import *
from genbase import Base
from xpr import X
import xsim

M16 = 'v_mfma_f32_16x16x32_bf16'
M32 = 'v_mfma_f32_32x32x16_bf16'

SN = dict(b=2, w=sW, r=sR, c=sC, r2=sR2, c2=sC2, loc=sLOC, BIGR=sBIG, cc=sCC, kq=sKQ, w5k=sW5K,
          T0=T0, T1=T1, T2=T2, T3=T3, T4=T4, T5=T5, T6=T6, T7=T7, U0=U0, U1=U1, U2=U2, U3=U3, U4=U4, U5=U5,
          aof=sAOF, dm=sDM, dg=sDG)
RANGE = dict(b=256, w=4, r=16, c=16, r2=32, c2=8, loc=32, cc=60, kq=54, w5k=16000)
CONST = {k: x for k, x in vars(layout).items() if isinstance(x, int) and k.isupper() and k not in SN}


class Side:
    def __init__(self):
        self.streams = []

    def add(self, gen, start, stride=1, per=1):
        self.streams.append([gen, start, stride, per])

    def at(self, slot, fn):
        def g():
            fn()
            yield
        self.add(g(), slot)

    def run(self, slot):
        for st in self.streams:
            gen, start, stride, per = st
            if gen is not None and slot >= start and (slot - start) % stride == 0:
                for _ in range(per):
                    try:
                        next(gen)
                    except StopIteration:
                        st[0] = None
                        break

    def drain(self):
        for st in self.streams:
            if st[0] is not None:
                for _ in st[0]:
                    pass
                st[0] = None


def run(gen, n=None):
    for i, _ in enumerate(gen):
        if n is not None and i + 1 >= n:
            break


class Gen(Base):
    def __init__(self, stop=99, ts=False, mapping=(8, 8, 4), opt=None):
        self.k = Asm()
        self.stop = stop
        self.ts = ts
        self.map1, self.map2, self.map3 = mapping
        self.nts = 0
        self.tsnames = []
        self.opt = opt or {}
        self.rng = random.Random(1)

    def o(self, name, default):
        return self.opt.get(name, default)

    def _x(self, vec, dst, text, tmp, names):
        lines = []
        x = X(lines.append, SN, dict(l=vL, tid=vTID, l16=vL16), CONST, XT)
        extra = {n: ('v', r) for n, r in names.items()}
        if vec:
            x.vx(dst, text, tmp, **extra)
        else:
            x.sx(dst, text)
        for _ in range(6):
            env = dict(CONST)
            S, V = {}, {}
            for n, r in SN.items():
                env[n] = BIG if n == 'BIGR' else self.rng.randrange(RANGE.get(n, 200))
                S['s%d' % r] = env[n]
            V['v%d' % vL] = list(range(64))
            V['v%d' % vL16] = [16 * i for i in range(64)]
            V['v%d' % vTID] = [64 * env['w'] + i for i in range(64)]
            for n, r in names.items():
                V['v%d' % r] = [self.rng.randrange(300) for _ in range(64)]
            V0 = {kk: list(x_) for kk, x_ in V.items()}
            xsim.run(lines, S, V)
            env['sel'] = lambda p, y, z: y if p else z
            env['min'] = min
            for ln in range(64 if vec else 1):
                env.update(l=ln, l16=16 * ln, tid=64 * env['w'] + ln)
                for n, r in names.items():
                    env[n] = V0['v%d' % r][ln]
                xsim.U.wide = False
                ref = xsim.U(eval(text, {n: (xsim.U(y) if isinstance(y, int) else y) for n, y in env.items()})).v
                got = V['v%d' % dst][ln] if vec else S['m0' if dst == 'm0' else 's%d' % dst]
                assert got == ref or (vec and xsim.U.wide), (text, got, ref, lines)
        for ln in lines:
            self.k.e(ln)

    def sx(self, dst, text):
        self._x(False, dst, text, (), {})

    def vx(self, dst, text, tmp=(), **names):
        self._x(True, dst, text, tmp, names)

    def coords(self, dr, dc, ncol, C):
        lc, nx = C.bit_length() - 1, ncol // C
        self.sx(dr, '((b&7)>>%d)*%d + (loc>>%d)' % (nx.bit_length() - 1, 32 // C, lc))
        self.sx(dc, '(b&%d)*%d + (loc&%d)' % (nx - 1, C, C - 1) if nx > 1 else 'loc&%d' % (C - 1))

    def stamp(self, name):
        if not self.ts:
            return
        k = self.k
        k.wait_all(vm=False, lg=True)
        k.e('s_memrealtime %s' % s(sTS, 2))
        k.wait_all(vm=False, lg=True, force=True)
        k.e('v_writelane_b32 %s, %s, %d' % (v(vTS), s(sTS), self.nts))
        self.tsnames.append(name)
        self.nts += 1
        clk = ('top', 'p3 start', 'p3 done', 'end')
        if name in clk:
            k.e('s_memtime %s' % s(sTS, 2))
            k.wait_all(vm=False, lg=True, force=True)
            k.e('v_writelane_b32 %s, %s, %d' % (v(vTS), s(sTS), 60 + clk.index(name)))

    def poll_issue(self, t):
        return self.k.vm('buffer_load_dword %s, %s, %s, 0 offen sc1' % (v(t + 1), v(t), s(WS, 4)))

    def spin(self, first_wait, check, reissue):
        k = self.k
        e = k.e
        top, done = k.newlabel('spin'), k.newlabel('seen')
        e('s_mov_b32 %s, %d' % (s(sCNT), POLL_LIMIT))
        k.wait(vm=first_wait)
        k.label(top)
        check()
        e('s_cmp_eq_u64 vcc, 0')
        e('s_cbranch_scc1 %s' % done)
        state = (k.vm_seq, k.vm_done)
        if self.o('slp', 1):
            e('s_sleep %d' % self.o('slp', 1))
        reissue()
        k.wait_all(vm=True, lg=False, force=True)
        k.vm_seq, k.vm_done = state
        e('s_sub_u32 %s, %s, 1' % (s(sCNT), s(sCNT)))
        e('s_cbranch_scc0 %s' % top)
        k.label(done)

    def poll_check(self, t, h):
        self.spin(h, lambda: self.k.e('v_cmp_ne_u32 vcc, %s, %s' % (s(TAG), v(t + 1))), lambda: self.poll_issue(t))

    def tag_check(self, regs, t):
        e = self.k.e
        for i, r in enumerate(regs):
            e('v_xor_b32 %s, %s, %s' % (v(r), s(sTB + (i & 3)), v(r)))
            if i == 1:
                e('v_or_b32 %s, %s, %s' % (v(t), v(r - 1), v(r)))
            elif i & 1:
                e('v_or3_b32 %s, %s, %s, %s' % (v(t), v(r - 1), v(r), v(t)))
        e('v_and_b32 %s, 0xff, %s' % (v(t), v(t)))
        e('v_cmp_ne_u32 vcc, 0, %s' % v(t))

    def flag(self, off, tmp):
        k = self.k
        k.e('v_mov_b32 %s, %s' % (v(tmp), s(TAG)))
        k.e('s_mov_b64 exec, 1')
        h = k.vm('buffer_store_dword %s, off, %s, %s sc1' % (v(tmp), s(WS, 4), s(off)))
        k.e('s_mov_b64 exec, -1')
        return h

    def gemm(self, items, buf, nbuf, pd, side=None, wgrp=1):
        k = self.k
        hs = {}

        def issue(i):
            if i < len(items):
                hs[i] = self.dsr(v(buf + 4 * (i % nbuf), 4), items[i][0], items[i][1])
        for i in range(pd):
            issue(i)
        slot = 0
        for i, (_, _, mms) in enumerate(items):
            for j, (acc, first, other, hv) in enumerate(mms):
                k.wait(vm=hv() if hv else None, lg=hs[min(i + wgrp - 1 - i % wgrp, len(items) - 1)])
                k.e('%s %s, %s, %s, %s' % (M16, acc, v(buf + 4 * (i % nbuf), 4), other, '0' if first else acc))
                if j == 0:
                    issue(i + pd)
                if side:
                    side.run(slot)
                slot += 1
        if side:
            side.drain()

    def g_lin_dma(self, n, out=None):
        e = self.k.e
        for j in range(n):
            if j & 3 == 0:
                if j:
                    e('s_add_u32 %s, %s, 4096' % (s(sDG), s(sDG)))
                    e('s_add_u32 %s, %s, 4096' % (s(sDM), s(sDM)))
                e('s_mov_b32 m0, %s' % s(sDM))
            h = self.dma(vL16, WS, sDG, 1024 * (j & 3), sc1=True)
            if out is not None:
                out[0] = h
            yield

    def g_act_loads(self, hs):
        e = self.k.e
        for ks in range(20):
            if ks and ks & 3 == 0:
                e('s_add_u32 %s, %s, 4096' % (s(sAOF), s(sAOF)))
                e('s_add_u32 %s, %s, 4096' % (s(sAOF2), s(sAOF2)))
            for tok in range(2):
                hs[(ks, tok)] = self.ld(a(8 * ks + 4 * tok, 4), vL16, WS, sAOF + tok, 1024 * (ks & 3), sc1=True)
                yield

    def g_dma160(self, srd, ssrc, vsrc, lbase, rowbytes, out):
        e = self.k.e
        for j in range(5):
            e('s_add_u32 m0, %s, %d' % (s(sW5K), lbase + 1024 * j))
            out[0] = self.dma(vsrc + (j & 1), srd, ssrc)
            if j < 4:
                e('s_add_u32 %s, %s, %d' % (s(ssrc), s(ssrc), 8 * rowbytes))
            yield

    def src160(self, d, rowbytes, t):
        self.vx(d, '(l>>3)*%d + ((l&7)^(((l>>4)&1)*2)^((w&1)*4))*16' % rowbytes, (t, t + 1))
        self.k.e('v_xor_b32 %s, 64, %s' % (v(d + 1), v(d)))

    def tr160(self, d, t):
        self.vx(d, '((l>>4)*8 + ((l>>2)&3))*128 + ((((l>>4)&1)*2 + ((l>>3)&1))^w)*32 + (l&3)*8', (t, t + 1, t + 2))

    def g_gemv(self, vtr, lbase, lsilu, fr, t):
        k = self.k
        e = k.e
        hs = []
        e('v_and_b32 %s, 48, %s' % (v(t), v(vL)))
        e('v_add_u32 %s, %d, %s' % (v(t + 1), lsilu, v(t)))
        for ks in range(5):
            self.dstr(v(fr + 8 * ks, 2), vtr, lbase + ks * 4096)
            self.dstr(v(fr + 8 * ks + 2, 2), vtr, lbase + ks * 4096 + 512)
            hs.append(self.dsr(v(fr + 8 * ks + 4, 4), t + 1, ks * 64))
            yield
        d = v(t + 2, 4)
        for ks in range(5):
            k.wait(lg=hs[ks])
            e('%s %s, %s, %s, %s' % (M16, d, v(fr + 8 * ks, 4), v(fr + 8 * ks + 4, 4), d if ks else '0'))
            yield
        yield
        yield
        yield
        for i in range(4):
            e('v_add_u32 %s, 0x80, %s' % (v(t + 2 + i), v(t + 2 + i)))
            e('v_and_b32 %s, 0xffffff00, %s' % (v(t + 2 + i), v(t + 2 + i)))
            e('v_or_b32 %s, %s, %s' % (v(t + 2 + i), s(sTB + i), v(t + 2 + i)))
            yield
        e('s_mov_b32 exec_lo, 0x00010001\ns_mov_b32 exec_hi, 0x00010001')
        self.h_gemv = self.st(d, t, WS, sJ1)
        e('s_mov_b64 exec, -1')
        yield

    def silu_c(self, d, t):
        e = self.k.e
        self.k.wait(vm=self.h_c)
        e('v_lshlrev_b32 %s, 16, %s' % (v(d), v(d)))
        e('v_mul_f32 %s, 0xbfb8aa3b, %s' % (v(t), v(d)))
        e('v_exp_f32 %s, %s' % (v(t), v(t)))
        e('v_add_f32 %s, 1.0, %s' % (v(t), v(t)))
        e('v_rcp_f32 %s, %s' % (v(t), v(t)))
        e('v_mul_f32 %s, %s, %s' % (v(d), v(t), v(d)))
        e('v_cvt_pk_bf16_f32 %s, %s, %s' % (v(d), v(d), v(d)))

    def head(self):
        k = self.k
        e = k.e
        e('s_cmp_ge_u32 s2, 256')
        e('s_cbranch_scc1 L_end')
        e('s_getpc_b64 %s' % s(T0, 2))
        k.label('L_pc')
        for r, off in ((WM, 72), (CS, 64), (WQ, 8), (WP, 16), (XS, 0), (WS, 96), (SE, 24), (S2, 56), (OUTS, 80)):
            e('s_load_dwordx2 %s, s[0:1], %d' % (s(r, 2), off))
        e('s_load_dwordx4 %s, s[0:1], 40' % s(PB, 4))
        e('s_lshr_b32 %s, s2, 3' % s(sLOC))
        k.c('warm L2 with this kernel\'s code: each workgroup reads a 2 KiB slice')
        e('s_lshl_b32 %s, %s, 11' % (s(T2), s(sLOC)))
        e('v_lshl_add_u32 v16, v0, 3, %s' % s(T2))
        e('v_min_u32 v16, L_code_end-L_pc-8, v16')
        e('v_mov_b32 v19, %s' % s(T1))
        e('v_add_co_u32 v18, vcc, %s, v16' % s(T0))
        e('v_addc_co_u32 v19, vcc, 0, v19, vcc')
        k.vm('global_load_dwordx2 v[214:215], v[18:19], off')
        if self.ts:
            e('v_mov_b32 %s, 0' % v(vTS))
            self.stamp('top')
        e('v_lshrrev_b32 v16, 6, v0')
        e('v_and_b32 %s, 63, v0' % v(vL))
        e('v_readfirstlane_b32 %s, v16' % s(sW))
        e('v_lshlrev_b32 %s, 4, %s' % (v(vL16), v(vL)))
        e('s_mov_b32 %s, 0x%x' % (s(sBIG), BIG))
        self.srd(CS, 1280)
        self.srd(XS, 2048 * 1280)
        self.srd(WM, 640 * 3840 * 2)
        self.coords(sR, sC, 16, self.map1)
        self.sx(sW5K, 'w*5120')
        e('v_lshlrev_b32 v212, 1, v0')
        self.vx(30, '(l&7)*1280 + (l>>3)*16', (16, 17))
        self.sx(T6, '(r*16 + c)*10240 + w*128')
        self.sx(T7, 'sel(w<2, T6, BIGR)')

    def setup_rest(self):
        k = self.k
        e = k.e
        e('s_load_dword %s, %s, %d' % (s(TAG), s(WS, 2), EPOCH))
        self.srd(WS, WS_END)
        k.c('touch the lines that are polled later and this workgroup\'s kv slot')
        self.vx(16, 'sel(l<8, (b*32 + w*8 + l)*128 + %d, (c*16 + r)*KPS + (w*7 + min(l,14))*128 + %d)' % (PB0, KP - 1024),
                (17, 18, 19, 22))
        e('s_mov_b64 exec, 0x7fff')
        k.vm('buffer_load_dword v213, v16, %s, 0 offen' % s(WS, 4))
        e('s_mov_b64 exec, -1')
        e('s_mov_b32 %s, 0x3fb8aa3b\ns_mov_b32 %s, 0x3fb8aa3b' % (s(LOG2E), s(LOG2E + 1)))
        self.srd(OUTS, 2048 * 1280)
        self.srd(SL, 640 * 3456)
        self.coords(sR2, sC2, 8, self.map2)
        e('s_bitcmp1_b32 s2, 0')
        e('s_cselect_b64 %s, %s, %s' % (s(SL, 2), s(PB + 2, 2), s(PB, 2)))
        self.sx(sJ1, 'sel(kq<4, MODP + kq*15360 + cc*256 + w*64, BIGR)')
        self.tr160(208, 16)
        e('s_waitcnt lgkmcnt(0)')
        e('s_add_u32 %s, %s, 0x9e3779b9' % (s(TAG), s(TAG)))
        e('s_mov_b32 %s, %s' % (s(TAG + 1), s(TAG)))
        e('s_and_b32 %s, %s, 0xff' % (s(sTB), s(TAG)))
        e('s_bfe_u32 %s, %s, 0x80008' % (s(sTB + 1), s(TAG)))
        e('s_bfe_u32 %s, %s, 0x80010' % (s(sTB + 2), s(TAG)))
        e('s_lshr_b32 %s, %s, 24' % (s(sTB + 3), s(TAG)))

    def load_c(self):
        self.sx(T2, 'kq*320')
        self.h_c = self.k.vm('buffer_load_ushort v209, v212, %s, %s offen' % (s(CS, 4), s(T2)))

    def load_x(self):
        self.ld(v(32, 4), 30, XS, T6, 0)
        self.ld(v(36, 4), 30, XS, T6, 512)
        self.h_x = self.ld(v(40, 4), 30, XS, T7, 1024)

    def ln_partial(self):
        k = self.k
        e = k.e
        XN = 176
        k.c('partial sums and sums of squares of the eight rows')
        k.wait(vm=self.h_x)
        self.unpack(XN, 32, 12)
        e('v_pk_add_f32 v[16:17], %s, %s' % (v(XN, 2), v(XN + 2, 2)))
        e('v_pk_mul_f32 v[18:19], %s, %s' % (v(XN, 2), v(XN, 2)))
        for i in range(1, 12):
            if i > 1:
                e('v_pk_add_f32 v[16:17], v[16:17], %s' % v(XN + 2 * i, 2))
            e('v_pk_fma_f32 v[18:19], %s, %s, v[18:19]' % (v(XN + 2 * i, 2), v(XN + 2 * i, 2)))
        e('v_add_f32 v16, v16, v17')
        e('v_add_f32 v17, v18, v19')
        self.xsum(16, 18, (8, 16, 32))
        self.xsum(17, 18, (8, 16, 32))
        self.vx(20, '(l&7)*32 + w*8', (18,))
        self.dsw(20, 'v[16:17]', L_LNR, n=2)

    def role_a(self):
        k = self.k
        e = k.e
        k.c('role A: shift/scale GEMV first, then relayout of wo and w2 (32 rows x 320 columns per unit)')
        self.sx(T2, 'b*3277>>16')
        self.sx(T3, 'b - T2*20')
        self.sx(U1, '(T2*4 + w)*307200 + T3*128')
        self.src160(210, 7680, 16)
        e('s_waitcnt lgkmcnt(0)')
        self.sx(sKQ, 'T2')
        self.sx(sCC, 'T3')
        self.stamp('entry')
        self.load_c()
        hw = [0]
        run(self.g_dma160(WM, U1, 210, L_J1, 7680, hw))
        self.load_x()
        self.srd(S2, 1728 * 1280)
        e('s_cmp_lt_u32 s2, 40')
        e('s_cselect_b64 %s, %s, %s' % (s(SE, 2), s(SE, 2), s(S2, 2)))
        self.csel(SE + 2, 640 * 1280, 1728 * 1280)
        e('s_mov_b32 %s, 0x20000' % s(SE + 3))
        for j in range(5):
            e('v_add_u32 v16, %d, %s' % (64 * j, v(vL)))
            self.vx(200 + j, 'q*16 + ((q*1639)>>16)*640', (17,), q=16)
        hu = [0, 0]
        for i, (srd, lb, ssrc, sdst) in enumerate(((SE, L_SE, U2, U4), (S2, L_SE2, U3, U5))):
            if i == 0:
                self.sx(T2, 'sel(b<40, b, b - 40)')
                self.sx(T3, 'sel(b<40, 20, 54)')
                self.sx(T5, 'sel(b<40, WOF, W2F)')
            else:
                self.sx(T2, '151 - b')
                self.sx(T3, '54')
                self.sx(T5, 'W2F')
            self.sx(T4, 'sel(T2>=T3, T3, 0)')
            self.sx(T0, 'T2 - T4')
            self.sx(ssrc, 'sel(T0<T3, (T0*4 + w)*10240 + sel(T4>0, 640, 0), BIGR)')
            self.sx(sdst, 'sel(T0<T3, (T4*4 + T0)*5120 + w*256 + T5, BIGR)')
            if i == 0:
                self.sx(T1, 'T3*5120')
            for j in range(5):
                e('s_add_u32 m0, %s, %d' % (s(sW5K), lb + 1024 * j))
                hu[i] = self.dma(200 + j, srd, ssrc)
        self.setup_rest()
        self.silu_c(209, 16)
        self.dsw(212, v(209), L_SILU, n=0)
        k.wait(vm=hw[0])
        self.barrier()
        self.stamp('first landed')
        run(self.g_gemv(208, L_J1, L_SILU, 44, 24))
        self.stamp('first stored')
        self.ln_partial()
        self.vx(16, '((l>>2)&3)*640 + (l>>4)*160 + (l&3)*40 + w5k', (17, 18))
        self.vx(17, 'q + (l&1)*8', (19,), q=16)
        self.vx(18, 'q + ((l&1)^1)*32', (19,), q=16)
        self.vx(19, '(l>>4)*T1 + (l&15)*16', (20,))
        self.vx(20, '(l>>4)*276480 + (l&15)*16', (21,))
        e('v_add_u32 v21, %d, v17' % L_SE2)
        e('v_add_u32 v22, %d, v18' % L_SE2)
        for i in range(2):
            k.wait(vm=hu[i])
            hs = []
            for t in range(5):
                for kh in range(2):
                    base = (17, 21)[i] + (t == 4)
                    h = self.dstr(v(96 + 20 * i + 4 * t + 2 * kh, 2), base,
                                  (L_SE if i == 0 else 0) + 2560 * kh + (8 * t if t < 4 else 0))
                hs.append(h)
            for t in range(5):
                k.wait(lg=hs[t])
                if t == 4:
                    e('s_add_u32 %s, %s, 4096' % (s(U4 + i), s(U4 + i)))
                self.st(v(96 + 20 * i + 4 * t, 4), 19 + i, WS, U4 + i, 1024 * t if t < 4 else 0)
        e('s_mov_b32 %s, %s' % (s(sFL), s(sBIG)))
        e('s_mov_b32 %s, %s' % (s(sJ1), s(sBIG)))
        e('s_mov_b32 %s, %s' % (s(U0), s(sBIG)))

    def role_b(self):
        k = self.k
        e = k.e
        k.c('role B: fold w_phi into 32 rows of four heads and transpose them to fragments')
        self.srd(WQ, 640 * 1920 * 2)
        self.srd(WP, 25600)
        self.sx(T4, 'b - 96')
        self.sx(T0, 'T4*3277>>16')
        self.sx(T1, 'T4 - T0*20')
        self.sx(T2, 'T1*122880 + T0*160')
        self.sx(T3, 'sel(w==3, BIGR, T2)')
        for j in range(4):
            self.vx(16, 'l + w*256 + %d' % (64 * j))
            self.vx(17, '(q*2185)>>16', q=16)
            self.vx(18, 'q - p*30', (19,), q=16, p=17)
            self.vx(24 + j, 'p*3840 + m*16 + ((m*26)>>8)*1120', (19,), p=17, m=18)
        self.sx(T5, '(T0*2 + (w>>1))*1600 + (w&1)*1024')
        e('s_waitcnt lgkmcnt(0)')
        self.stamp('entry')
        for j in range(4):
            self.sx('m0', 'w*4096 + %d' % (L_FR + 1024 * j))
            self.dma(24 + j, WQ, T2 if j < 3 else T3)
        self.sx('m0', '(w>>1)*3072 + (w&1)*1024 + L_WPHI')
        h_wphi = self.dma(vL16, WP, T5)
        self.load_x()
        self.sx(sKQ, 'T4*1639>>16')
        self.sx(sCC, 'T4 - kq*40 + 20')
        self.load_c()
        self.sx(U0, '(kq*4 + w)*307200 + cc*128')
        self.src160(210, 7680, 16)
        self.setup_rest()
        k.c('identity matrix and zero words, one copy per head pair')
        self.vx(16, 'q - ((q*3121)>>16)*21', (17,), q=212)
        self.vx(18, 'sel(tid<200, sel(m==0, 0x3f80, sel(m==20, 0x3f800000, 0)), 0)', (17, 19, 20, 21, 22, 23), m=16)
        e('v_lshlrev_b32 v19, 2, v0')
        self.dsw(19, v(18), L_WPHI + 2048, n=1)
        self.dsw(19, v(18), L_WPHI + 3072 + 2048, n=1)
        k.c('operand addresses: tile 0 = k/v tile w; tile 1 = k/v tile 4 (wave 0) or q tile w-1')
        BA, AA = 152, 164
        self.vx(20, '(l>>4)*8 + ((l>>2)&3) - ((l>>1)&1)*20', (16, 17))
        self.vx(23, 'q - (l&1)*40', (16,), q=20)
        self.vx(22, 'sel((l&1)==1, 2048, ((l>>1)&1)*800)', (16, 17, 18, 19))
        self.vx(21, 'sel(w==0, q + 32, ((l>>1)&1)*800 + (l&1)*24 + w*8 - 8)', (16, 17, 18, 19), q=22)
        self.vx(20, 'sel(w==0, p, q + (l&1)*sel(w==3, 4096, 0))', (16, 17, 18, 19), q=20, p=23)
        self.vx(22, 'q + w*8', q=22)
        e('v_mov_b32 v29, %d' % (2048 + 800))
        for ti, (dreg, breg) in enumerate(((23, 22), (20, 21))):
            for st in range(3):
                for kh in range(2):
                    o = BA + 6 * ti + 2 * st + kh
                    e('v_add_u32 v17, %d, %s' % (32 * st + 4 * kh, v(dreg)))
                    e('v_mad_u32_u24 %s, v17, 40, %s' % (v(o), v(breg)))
                    e('v_cmp_gt_u32 vcc, 20, v17')
                    e('v_cndmask_b32 %s, v29, %s, vcc' % (v(o), v(o)))
        self.vx(17, '((l&3) + ((l>>2)&3)*8)*480 + (l>>4)*16', (16, 18))
        self.vx(AA, 'q + 160', q=17)
        self.vx(AA + 1, 'q + sel(l<16, 224, 304)', (16, 18, 19, 20), q=17)
        self.vx(AA + 2, 'q + 368', q=17)
        for st in range(3):
            self.vx(AA + 3 + st, 'sel(w==0, p, q + %d)' % (64 * min(st, 1)), (16, 18, 19, 20), q=17, p=AA + st)
        self.sx(T2, 'WF + T0*327680')
        self.sx(T4, '(T1*5 + 60 + w)*1024 + T2')
        self.sx(T5, 'sel(w==0, T1*5 + 64, T1*3 + w - 1)*1024 + T2')
        self.sx(sFL, 'sel(w==0, F_WP + (T0*20 + T1)*128, BIGR)')
        k.wait(vm=h_wphi)
        self.barrier()
        self.stamp('first landed')
        hb = {}
        for cp in range(2):
            for ti in range(2):
                for st in range(3):
                    B, A = 44 + 24 * cp + 12 * ti + 4 * st, (92, 216)[cp] + 24 * ti + 8 * st
                    if cp == 1 and ti == 1 and st == 2:
                        A = 140
                    for kh in range(2):
                        self.dstr(v(B + 2 * kh, 2), BA + 6 * ti + 2 * st + kh, L_WPHI + 3072 * cp)
                    for hf in range(2):
                        h = self.dsr(v(A + 4 * hf, 4), AA + 3 * ti + st, L_FR + 80 * cp + 1920 * hf)
                    hb[(cp, ti, st)] = (h, A, B)
                    if cp == 1 or ti == 1:
                        self.fold_mm(hb, 6 * cp + 3 * ti + st - 3)
        for i in range(9, 12):
            self.fold_mm(hb, i)
        self.silu_c(209, 16)
        for cp in range(2):
            for ti in range(2):
                o = 44 + 8 * cp + 4 * ti
                self.pack(o, 176 + 16 * cp + 8 * ti, 4)
                self.st(v(o, 4), vL16, WS, T4 + ti)
                if cp == 0:
                    e('s_add_u32 %s, %s, 163840' % (s(T4 + ti), s(T4 + ti)))
        self.stamp('first stored')
        self.ln_partial()

    def fold_mm(self, hb, i):
        cp, rest = divmod(i, 6)
        ti, st = divmod(rest, 3)
        h, A, B = hb[(cp, ti, st)]
        self.k.wait(lg=h)
        for hf in range(2):
            d = v(176 + 16 * cp + 8 * ti + 4 * hf, 4)
            self.k.e('%s %s, %s, %s, %s' % (M16, d, v(A + 4 * hf, 4), v(B, 4), d if st else '0'))

    def p0(self):
        k = self.k
        e = k.e
        self.head()
        e('s_cmp_ge_u32 s2, 96')
        e('s_cbranch_scc1 L_role_b')
        state = (k.vm_seq, k.vm_done, k.lg_seq, k.lg_done, self.nts, list(self.tsnames))
        self.role_a()
        k.wait_all(vm=False, lg=True)
        e('s_branch L_join')
        k.label('L_role_b')
        k.vm_seq, k.vm_done, k.lg_seq, k.lg_done, self.nts, self.tsnames = state
        self.role_b()
        k.wait_all(vm=False, lg=True)
        k.label('L_join')
        self.make_h()

    def make_h(self):
        k = self.k
        e = k.e
        XN = 176
        k.c('gather shift/scale for this wave\'s columns')
        self.vx(19, '(l>>5)*2560 + ((l>>4)&1)*1024 + (l&15)*16', (16, 17))
        self.vx(20, '((l>>4)&1)*2560 + (l&15)*16 + sel(w<2, 2048, 0)', (16, 17))
        for kq in range(4):
            self.sx(PB + kq, 'w*256 + %d' % (MODP + 15360 * kq))

        def issue():
            for kq in range(4):
                self.ld(v(64 + 4 * kq, 4), 19, WS, PB + kq, 0, sc1=True)
                h = self.ld(v(80 + 4 * kq, 4), 20, WS, PB + kq, 0, sc1=True)
            return h
        h = issue()
        self.sx(T6, 'w*1536 + L_SCSH')
        self.vx(21, '(l>>5)*768 + ((l>>4)&1)*256 + (l&15)*16 + T6', (16, 17))
        self.vx(22, '((l>>4)&1)*768 + (l&15)*16 + T6', (16, 17))
        self.vx(16, 'l>>5')
        self.vx(17, '(l>>4)&1')
        e('v_cvt_f32_u32 v26, v16')
        e('v_cvt_f32_u32 v28, v17')
        self.vx(24, '(l>>3)*32 + T6', (16,))
        self.vx(23, '(l>>3)*256 + (l&7)*16', (16,))
        self.vx(25, '(l&7)*32', (16,))
        self.vx(250, 'min(l,19)*128 + (c>>1)*2560 + F_WP', (16,))
        self.sx(T2, 'HF + (r*8 + (c>>1))*20480 + (c&1)*128 + w*2048')
        self.sx(T3, 'T2 + 8192')
        self.sx(T4, 'sel(w<2, T2 + 16384, BIGR)')
        self.sx(sFL2, 'F_H + ((r*4 + (c>>2))*16 + (c&3)*4 + w)*128')
        self.spin(h, lambda: self.tag_check(list(range(64, 96)), 16), issue)
        self.stamp('mod seen')
        e('s_barrier')
        self.dsr(v(56, 4), 25, L_LNR)
        hl = self.dsr(v(60, 4), 25, L_LNR + 16)
        self.flag(sFL, 16)
        self.round_mod(44, 64, 26)
        self.dsw(21, v(44, 4))
        self.round_mod(48, 80, 28)
        self.dsw(22, v(48, 4), 512)
        hs = []
        for j in range(3):
            self.dsr(v(96 + 16 * j, 4), 24, 256 * j)
            self.dsr(v(100 + 16 * j, 4), 24, 256 * j + 16)
            self.dsr(v(104 + 16 * j, 4), 24, 768 + 256 * j)
            hs.append(self.dsr(v(108 + 16 * j, 4), 24, 768 + 256 * j + 16))
        k.wait(lg=hl)
        e('v_pk_add_f32 v[56:57], v[56:57], v[58:59]')
        e('v_pk_add_f32 v[60:61], v[60:61], v[62:63]')
        e('v_pk_add_f32 v[56:57], v[56:57], v[60:61]')
        e('v_mul_f32 v56, 0x3acccccd, v56')
        e('v_mul_f32 v58, v56, v56')
        e('v_mov_b32 v59, 0x3acccccd')
        e('v_fma_f32 v57, v57, v59, -v58')
        e('v_max_f32 v57, 0, v57')
        e('v_add_f32 v57, 0x3727c5ac, v57')
        e('v_rsq_f32 v58, v57')
        e('v_mul_f32 v60, v56, v58')
        for i in range(12):
            e('v_pk_fma_f32 %s, %s, v[58:59], v[60:61] op_sel_hi:[1,0,0] neg_lo:[0,0,1] neg_hi:[0,0,1]'
              % (v(XN + 2 * i, 2), v(XN + 2 * i, 2)))
        for j in range(3):
            k.wait(lg=hs[j])
            for i in range(4):
                e('v_pk_fma_f32 %s, %s, %s, %s' % (v(XN + 8 * j + 2 * i, 2), v(XN + 8 * j + 2 * i, 2),
                                                 v(104 + 16 * j + 2 * i, 2), v(96 + 16 * j + 2 * i, 2)))
            self.pack(52 + 4 * j, XN + 8 * j, 4)
            h_st = self.st(v(52 + 4 * j, 4), 23, WS, T2 + j)
        h_wp = self.poll_issue(250)
        k.c('addresses for the first projection')
        self.sx(T7, 'WF + c*163840')
        self.sx(sDM, 'w*25600 + L_X')
        self.sx(sDG, 'T7 + dm')
        self.sx(sAOF, 'HF + (r*4 + w)*40960')
        self.sx(sAOF2, 'aof + 20480')
        self.vx(252, '(l&15)*128 + (r*4 + w)*2048 + F_H', (16,))
        k.wait(vm=h_st)
        self.flag(sFL2, 16)
        self.stamp('h flag')
        self.poll_check(250, h_wp)
        self.stamp('wp seen')

    def p1(self):
        k = self.k
        e = k.e
        k.c('folded k/v weights -> LDS')
        gx = self.g_lin_dma(25)
        run(gx, 10)
        k.c('relayout unit of w1/w3 (160 rows x 64 columns), loaded after the first pass')
        self.sx(T0, 'b>>1')
        self.sx(T2, 'T0*2428>>16')
        self.sx(T3, 'T0 - T2*27')
        self.sx(T4, 'w*2 + (b&1)')
        self.sx(U1, 'sel(b<216, (T2*4 + w)*138240 + T3*128, BIGR)')
        self.sx(T5, '((T3*4 + T2)*40 + T4)*1024 + W13A')
        self.sx(T6, '(T2*440 + T3*8 + T4)*1024 + %d' % (W13B - 128 * 1024))
        self.sx(U2, 'sel(b<216, sel(T3<16, T5, T6), BIGR)')
        self.sx(U3, 'sel(T3<16, 8192, 90112)')
        self.src160(206, 3456, 16)
        self.sx(sFL, 'sel(w==0, sel(b<40, F_WO + b*128, BIGR), BIGR)')
        self.vx(250, 'min(l,19)*128 + (c2>>2)*2560 + F_WO', (16,))
        e('v_add_u32 %s, %d, %s' % (v(vA0), L_X, v(vL16)))
        e('v_add_u32 %s, %d, %s' % (v(vA1), L_X + 65536, v(vL16)))
        run(gx)
        h_poll = self.poll_issue(252)
        self.sx(sDM, 'w*15360')
        self.sx(sDG, 'T7 + dm')
        self.poll_check(252, h_poll)
        self.stamp('h seen')
        h_a = {}
        ga = self.g_act_loads(h_a)
        run(ga, 2 * self.o('pre1', 4))
        e('s_barrier')
        self.flag(sFL, 112)
        self.stamp('p1 start')
        ACC, QA, BUF = 16, 56, 80
        k.c('projection to k and v')
        side = Side()
        side.add(ga, 1, 5)
        hy, hr = [0], [0]
        side.add(self.g_lin_dma(15, hy), self.o('y0', 163), self.o('ys', 3))
        items = []
        for ks in range(20):
            for t in range(5):
                n = 5 * ks + t
                items.append((vA0 if n < 64 else vA1, (n % 64) * 1024,
                              [(v(ACC + 20 * tok + 4 * t, 4), ks == 0, a(8 * ks + 4 * tok, 4),
                                (lambda kk=ks, tt=tok: h_a[(kk, tt)])) for tok in range(2)]))
        self.gemm(items, BUF, 8, 6, side, wgrp=2)
        e('s_barrier')
        self.stamp('pass a done')
        k.c('feature map of k, staged with v as [token][phi 40 | v 20 | 1 | 0 0 0]')
        for u in range(20):
            e('v_permlane16_swap_b32 %s, %s' % (v(ACC + u), v(ACC + 20 + u)))
        E, SD, TM = 112, 152, 184
        mark = len(k.ins)
        self.softmax(ACC, E, SD, TM)
        body = k.ins[mark:]
        del k.ins[mark:]

        def g_raw():
            for _ in self.g_dma160(SL, U1, 206, L_RS, 3456, hr):
                yield
            for _ in self.g_dma160(WM, U0, 210, L_J1B, 7680, hr):
                yield
        gr = g_raw()
        for i, ins in enumerate(body):
            k.ins.append(ins)
            if i % self.o('raws', 12) == 6:
                next(gr, None)
        run(gr)
        h_wo = self.poll_issue(250)
        self.pack(SD + 20, ACC + 20, 10)
        e('v_mov_b32 %s, 0x3f80' % v(SD + 30))
        e('v_mov_b32 %s, 0' % v(SD + 31))
        self.vx(192, '(l>>5)*16384 + (l&31)*128 + (l&7)*16 + w*4096 + L_STG', (193,))
        for p in range(8):
            if p:
                e('v_xor_b32 %s, %d, v192' % (v(192 + p), 16 * p))
            self.dsw(192 + p, v(SD + 4 * p, 4))
        e('v_add_u32 v212, %d, v212' % L_SILU2)
        self.dsw(212, v(209), 0, n=0)
        self.vx(16, '(l>>2)*128 + (((l>>2)&7)^((l>>1)&1))*16 + (l&1)*8 + (w>>1)*16384 + L_STG', (17, 18))
        e('v_xor_b32 v17, 32, v16')
        e('v_xor_b32 v18, 64, v16')
        self.vx(19, 'q ^ ((w&1)*32)', q=18)
        k.wait(vm=hy[0])
        self.barrier()
        self.stamp('staged')
        KF = 112
        hs = []
        for ks in range(4):
            for b in range(4):
                for kh in range(2):
                    h = self.dstr(v(KF + 16 * ks + 4 * b + 2 * kh, 2), 16 + b, 4096 * ks + 2048 * kh)
            hs.append(h)
        k.c('store offsets of the partial kv: [head][d 21][f 40] bf16')
        self.vx(20, '(l&15) + (w&1)*16 - 8')
        self.vx(21, 'sel(q<21, q*80 + (l>>4)*8, BIGR)', (22, 23, 42, 43), q=20)
        self.vx(22, 'sel(l<32, q, BIGR)', (20, 23, 42, 43), q=21)
        self.sx(T2, 'KP + (c*16 + r)*KPS + (w>>1)*1680')
        self.sx(sFL, 'sel(w==0, F_KV + (c*16 + r)*128, BIGR)')
        D = 24
        for ks in range(4):
            k.wait(lg=hs[ks])
            for ft in range(3):
                e('%s %s, %s, %s, %s' % (M16, v(D + 4 * ft, 4), v(KF + 16 * ks + 4 * ft, 4),
                                       v(KF + 16 * ks + 12, 4), '0' if ks == 0 else v(D + 4 * ft, 4)))
        self.pack(36, D, 6)
        for ft in range(3):
            self.st(v(36 + 2 * ft, 2), 21 if ft < 2 else 22, WS, T2, 32 * ft, n=2)
        self.stamp('kv stored')
        k.c('projection to q; relayout, the second GEMV and the publication of kv run inside it')
        self.sx(sDM, 'w*25600 + L_WO')
        self.sx(sDG, 'WOF + c2*102400 + w*25600')
        self.vx(252, '(l&15)*128 + c*2048 + F_KV', (16,))
        e('v_add_u32 v208, %d, v208' % L_RS)
        side = Side()

        def g_mid():
            k.wait(vm=hr[0])
            e('s_barrier')
            yield
            hs1 = []
            for ks in range(5):
                self.dstr(v(112 + 4 * ks, 2), 208, ks * 4096)
                hs1.append(self.dstr(v(114 + 4 * ks, 2), 208, ks * 4096 + 512))
                yield
            gv = self.g_gemv(208, L_J1B - L_RS, L_SILU2, 132, 44)
            for ks in range(5):
                next(gv)
                k.wait(lg=hs1[ks])
                self.st(v(112 + 4 * ks, 4), vL16, WS, U2)
                if ks < 4:
                    e('s_add_u32 %s, %s, %s' % (s(U2), s(U2), s(U3)))
                yield
            for _ in gv:
                yield
            self.poll_check(250, h_wo)
            for _ in range(self.o('midw', 8)):
                yield
            k.wait(vm=self.h_gemv)
            e('s_barrier')
            self.flag(sFL, 50)
            yield
            for _ in self.g_lin_dma(25):
                yield
        side.add(g_mid(), self.o('mid0', 2), self.o('mids', 2))
        items = []
        for ks in range(20):
            for t in range(3):
                items.append((vL16, L_Y + (3 * ks + t) * 1024,
                              [(v(QA + 12 * tok + 4 * t, 4), ks == 0, a(8 * ks + 4 * tok, 4), None) for tok in range(2)]))
        self.gemm(items, BUF, 8, 6, side, wgrp=2)
        self.stamp('pass b done')
        for u in range(12):
            e('v_permlane16_swap_b32 %s, %s' % (v(QA + u), v(QA + 12 + u)))
        mark = len(k.ins)
        self.softmax(QA, E, 152, TM)
        tail = k.ins[mark + self.o('kvp', 100):]
        del k.ins[mark + self.o('kvp', 100):]
        self.h_kvp = self.poll_issue(252)
        k.ins.extend(tail)
        self.stamp('q done')

    def attn_out(self):
        k = self.k
        e = k.e
        PHIQ, G, SUM = 152, 184, 124
        k.c('sum the 16 partial kv blocks of this head pair')
        self.vx(112, 'sel(tid<210, tid*16, BIGR)', (113, 114, 115, 116))
        self.sx(T4, 'KP + c*%d' % (16 * KPS))
        self.poll_check(252, self.h_kvp)
        self.stamp('kv seen')
        hs = []
        for r in range(16):
            hs.append(self.ld(v(G + 4 * r, 4), 112, WS, T4, KPS if r & 1 else 0, sc1=True))
            if r & 1 and r < 15:
                e('s_add_u32 %s, %s, %d' % (s(T4), s(T4), 2 * KPS))
        self.vx(113, 'tid*16 + L_KVT')
        e('s_mov_b32 %s, 0x00003f80\ns_mov_b32 %s, 0x3f800000' % (s(T5), s(T6)))
        k.c('operand addresses: row i -> (head, output index), masked lanes read zeros')
        self.vx(114, '((l>>3)&3)*4 + (l&3)', (115,))
        self.vx(117, 'sel(((l>>2)&1)==(l>>5), (u + (l>>5)*4)*80 + (l>>5)*1680 + L_KVT, L_KVZ)', (115, 116, 119, 120, 121), u=114)
        self.vx(118, 'sel(u==4, 20, u + ((l>>5)^1)*16)*80 + (l>>5)*1680 + L_KVT', (115, 116, 119, 120, 121), u=114)
        self.vx(115, 'u + (((l>>2)&1)^(l>>5))*8', (116, 119), u=114)
        self.vx(118, 'sel(p<5, q, L_KVZ)', (116, 119, 120, 121), q=118, p=115)
        k.c('store offsets of o')
        self.vx(119, '((l>>4)&1)*20480 + (l&15)*16', (120,))
        self.vx(121, 'q + (l>>5)*8', (120,), q=119)
        self.vx(120, 'q + (l>>5)*768', (116,), q=119)
        self.sx(T2, 'OF + (r*4 + w)*40960 + c*1280')
        self.sx(sFL, 'F_O + ((r*4 + w)*16 + c)*128')
        self.sx(sKQ, 'min(w*6, 17) + 32')
        self.sx(sW2, 'W2F + (c2*54 + w*8)*5120')
        self.sx(sW2b, 'W2F + (c2*54 + kq)*5120')
        e('v_mov_b32 v136, 0')
        self.vx(137, '(l&31)*4')
        e('s_barrier')
        self.dsw(137, v(136), L_KVZ, n=1)
        self.gw2 = self.g_w2()
        for r in range(16):
            k.wait(vm=hs[r])
            for i in range(4):
                for hh in range(2):
                    d = v(SUM + 2 * i + hh)
                    e('v_dot2_f32_bf16 %s, %s, %s, %s' % (d, v(G + 4 * r + i), s(T5 + hh), d if r else '0'))
            if r >= 16 - self.o('w2e', 6):
                next(self.gw2)
        self.pack(132, SUM, 4)
        self.dsw(113, v(132, 4))
        self.barrier()
        self.stamp('kv summed')
        hs = []
        for st in range(5):
            self.dsr(v(G + 8 * st, 4), 117, 16 * st)
            hs.append(self.dsr(v(G + 8 * st + 4, 4), 118, 16 * st))
        for st in range(5):
            k.wait(lg=hs[st])
            for ot in range(2):
                e('%s %s, %s, %s, %s' % (M32, v(16 + 16 * ot, 16), v(G + 8 * st + 4 * ot, 4),
                                       v(PHIQ + 4 * st, 4), v(16 + 16 * ot, 16) if st else '0'))
        e('v_add_f32 v36, 0x358637bd, v36')
        e('v_rcp_f32 v36, v36')
        for i in range(10):
            e('v_pk_mul_f32 %s, %s, v[36:37] op_sel_hi:[1,0]' % (v(16 + 2 * i, 2), v(16 + 2 * i, 2)))
        self.pack(48, 16, 10)
        self.st(v(48, 4), 120, WS, T2, 0)
        self.st(v(52, 4), 120, WS, T2, 256)
        self.h_ost = self.st(v(56, 2), 121, WS, T2, 512, n=2)

    def g_ring(self, groups):
        e = self.k.e
        for grp in groups:
            if grp < 10:
                slot, n = (16 * grp) % 144, 4
                e('s_add_u32 %s, %s, %d' % (s(sDG), s(sRA), 16384 * grp))
                e('s_add_u32 m0, %s, %d' % (s(U4), self.ring_addr(slot)))
            else:
                slot, n = 24 + 12 * (grp - 10), 3
                e('s_add_u32 %s, %s, %d' % (s(sDG), s(sRB), 2 * 88 * 1024 * (grp - 10)))
                e('s_add_u32 m0, %s, %d' % (s(U5), self.ring_addr(slot)))
            for j in range(n):
                self.hring[grp] = self.dma(vL16, WS, sDG, 1024 * j, sc1=True)
                yield

    @staticmethod
    def ring_addr(slot):
        return slot * 1024 if slot < 48 else 61440 + (slot - 48) * 1024

    def w2reg(self, n):
        if n < 24:
            return a(160 + 4 * n, 4)
        if n < 40:
            return v(192 + 4 * (n - 24), 4)
        return a(4 * (n - 40), 4)

    def g_w2(self):
        e = self.k.e
        self.w2n = 0
        for n in range(70):
            m, sb = (n, sW2) if n < 40 else (n - 40, sW2b)
            if n == 65:
                e('s_cmp_lt_u32 %s, 2' % s(sW))
                e('s_cselect_b32 %s, %s, %s' % (s(sW2b), s(sW2b), s(sBIG)))
            if m and m & 3 == 0:
                e('s_add_u32 %s, %s, 4096' % (s(sb), s(sb)))
            self.ld(self.w2reg(n), vL16, WS, sb, 1024 * (m & 3), sc1=True)
            self.w2n = n + 1
            yield

    def g_w2_until(self, n):
        while self.w2n < n:
            next(self.gw2)
            yield

    def p2(self):
        k = self.k
        e = k.e
        ACC, BUF = 16, 80
        k.c('addresses for the output projection and the streams behind it')
        self.coords(sR, sC, 16, self.map3)
        self.lane_rowseg(46, 47, 112)
        self.sx(sXOFF, '(r2*4 + w)*20480 + c2*160')
        self.sx(sAOF, 'OF + (r2*4 + w)*20480')
        self.vx(250, '(l&15)*128 + (r2*2 + (w>>1))*2048 + F_O', (112,))
        self.vx(112, 'min(l,19)*16')
        for kq in range(4):
            self.sx(PB + kq, 'w*2560 + c2*320 + %d' % (MODP + 2 * 2560 + 15360 * kq))
        k.wait(vm=self.h_ost)
        self.flag(sFL, 113)
        self.stamp('o flag')
        self.ld(v(36, 4), 46, XS, sXOFF, 0)
        self.ld(v(40, 4), 46, XS, sXOFF, 16)
        self.ld(v(44, 2), 47, XS, sXOFF, 0, n=2)
        k.c('gate / shift / scale vectors for this workgroup\'s 80 output columns -> LDS')

        def issue():
            for kq in range(4):
                h = self.ld(v(116 + 4 * kq, 4), 112, WS, PB + kq, 0, sc1=True)
            return h
        h_mv = issue()
        run(self.g_w2_until(self.o('w2f', 12)))
        h_poll = self.poll_issue(250)
        e('s_cmp_eq_u32 %s, 2' % s(sW))
        e('s_cselect_b32 %s, 1.0, 0' % s(T2))
        e('v_mov_b32 v114, %s' % s(T2))
        self.vx(113, 'q + w*320', q=112)
        self.sx(sCC, 'c*11>>2')
        self.sx(sRA, 'W13A + c*163840 + w*4096')
        self.sx(sRB, 'W13B + ((w>>1)*88 + cc*2 + (w&1)*3)*1024')
        self.sx(U4, 'w*4096')
        self.sx(U5, 'w*3072')
        e('v_add_u32 %s, %d, %s' % (v(vA0), L_WO, v(vL16)))
        e('v_add_u32 %s, %d, %s' % (v(vA1), L_WO + 65536, v(vL16)))
        self.mv_addr(46, 47, 137)
        self.spin(h_mv, lambda: self.tag_check(list(range(116, 132)), 136), issue)
        self.round_mod(132, 116, 114)
        self.dsw(113, v(132, 4), L_MV)
        self.unpack(48, 36, 10)
        self.poll_check(250, h_poll)
        self.stamp('o seen')
        h_a = {}

        def g_a():
            for ks in range(20):
                if ks and ks & 3 == 0:
                    e('s_add_u32 %s, %s, 4096' % (s(sAOF), s(sAOF)))
                h_a[ks] = self.ld(a(4 * ks, 4), vL16, WS, sAOF, 1024 * (ks & 3), sc1=True)
                yield
        ga = g_a()
        run(ga, self.o('pre2', 9))
        self.barrier()
        self.mv_read(112, 0, 46, 47)
        self.mv_read(132, 2, 46, 47)
        self.mv_read(152, 1, 46, 47)
        k.c('output projection')
        self.hring = {}
        side = Side()
        side.add(ga, 2, self.o('s2', 5))
        side.add(self.g_ring(range(3)), 60, 3)
        items = []
        for ks in range(20):
            for t in range(5):
                n = 5 * ks + t
                items.append((vA0 if n < 64 else vA1, (n % 64) * 1024,
                              [(v(ACC + 4 * t, 4), ks == 0, a(4 * ks, 4), (lambda kk=ks: h_a[kk]))]))
        self.gemm(items, BUF, 8, 6, side, wgrp=2)
        self.stamp('p2 done')
        k.c('x1 = x + ga * attn, partial row statistics over 80 columns')
        X_ = 48
        self.vx(176, '(l&15)*16')
        self.vx(178, 'q + (l>>4)*256', (177,), q=176)
        self.sx(T4, 'ST + (r2*4 + w)*2048')
        self.sx(T5, 'T4 + c2*256')
        for i in range(10):
            e('v_pk_fma_f32 %s, %s, %s, %s' % (v(X_ + 2 * i, 2), v(ACC + 2 * i, 2), v(112 + 2 * i, 2), v(X_ + 2 * i, 2)))
        self.pack(X1P, X_, 10)
        self.unpack(X_, X1P, 10)
        self.pksum(68, X_, 10)
        self.xsum(68, 70, (16, 32))
        e('v_mul_f32 v72, 0x3c4ccccd, v68')
        for i in range(10):
            e('v_pk_add_f32 %s, %s, v[72:73] op_sel_hi:[1,0] neg_lo:[0,1] neg_hi:[0,1]' % (v(16 + 2 * i, 2), v(X_ + 2 * i, 2)))
        e('v_pk_mul_f32 v[68:69], v[16:17], v[16:17]')
        for i in range(1, 10):
            e('v_pk_fma_f32 v[68:69], %s, %s, v[68:69]' % (v(16 + 2 * i, 2), v(16 + 2 * i, 2)))
        e('v_add_f32 v74, v68, v69')
        self.xsum(74, 70, (16, 32))
        e('v_mov_b32 v73, %s' % s(TAG))
        e('v_mov_b32 v75, %s' % s(TAG))
        e('s_mov_b64 exec, 0xffff')
        self.st('v[72:75]', 176, WS, T5)
        e('s_mov_b64 exec, -1')
        e('s_barrier')
        RA = self.o('ring_a', 2)
        run(self.g_ring(range(3, 3 + RA)))

        def issue_st():
            self.ld(v(16, 4), 178, WS, T4, 0, sc1=True)
            return self.ld(v(20, 4), 178, WS, T4, 1024, sc1=True)

        def check_st():
            e('v_xor_b32 v24, %s, v17' % s(TAG))
            for r in (19, 21, 23):
                e('v_bitop3_b32 v24, %s, %s, v24 bitop3:0xbe' % (v(r), s(TAG)))
            e('v_cmp_ne_u32 vcc, 0, v24')
        h = issue_st()
        self.vx(40, '(l>>5)*1280 + q + ((l>>4)&1)*768', (41,), q=176)
        self.vx(42, '(l>>5)*1280 + q + ((l>>4)&1)*8', (41,), q=176)
        self.sx(T2, 'H2F + (r2*4 + w)*20480 + c2*2560')
        self.sx(sFL, 'F_H2 + ((r2*4 + w)*8 + c2)*128')
        k.c('collect the eight partial statistics (each 8-byte half carries the launch tag)')
        self.spin(h, check_st, issue_st)
        self.stamp('stats seen')
        e('v_add_f32 v24, v16, v20')
        self.xsum(24, 26, (16, 32))
        e('v_mul_f32 v24, 0xbe000000, v24')
        e('v_add_f32 v16, v16, v24')
        e('v_add_f32 v20, v20, v24')
        e('v_mul_f32 v16, v16, v16')
        e('v_fmac_f32 v16, v20, v20')
        e('v_add_f32 v18, v18, v22')
        e('v_fmac_f32 v18, 0x42a00000, v16')
        self.xsum(18, 26, (16, 32))
        e('v_mov_b32 v19, 0x3727c5ac')
        e('v_fmac_f32 v19, 0x3acccccd, v18')
        e('v_rsq_f32 v18, v19')
        e('v_mul_f32 v24, v24, v18')
        for i in range(10):
            e('v_pk_fma_f32 %s, %s, v[18:19], v[24:25] op_sel_hi:[1,0,0]' % (v(X_ + 2 * i, 2), v(X_ + 2 * i, 2)))
        for i in range(10):
            e('v_pk_fma_f32 %s, %s, %s, %s' % (v(X_ + 2 * i, 2), v(X_ + 2 * i, 2), v(132 + 2 * i, 2), v(152 + 2 * i, 2)))
        self.pack(28, X_, 10)
        self.st(v(28, 4), 40, WS, T2, 0)
        self.st(v(32, 4), 40, WS, T2, 256)
        self.h_h2st = self.st(v(36, 2), 42, WS, T2, 512, n=2)

    def g_silu(self, acc, npairs, tm, ob, soff, out, packed=True):
        e = self.k.e
        for p in range(npairs):
            g, u = acc + 16 * p, acc + 16 * p + 8
            o = ob + 4 * (p & 1)
            if packed:
                for i in range(4):
                    e('v_pk_mul_f32 %s, %s, %s neg_lo:[1,0] neg_hi:[1,0]' % (v(tm + 2 * i, 2), v(g + 2 * i, 2), s(LOG2E, 2)))
                    yield
            else:
                for i in range(8):
                    e('v_mul_f32 %s, 0xbfb8aa3b, %s' % (v(tm + i), v(g + i)))
                    yield
            for i in range(8):
                e('v_exp_f32 %s, %s' % (v(tm + i), v(tm + i)))
                yield
            if packed:
                for i in range(4):
                    e('v_pk_add_f32 %s, %s, 1.0 op_sel_hi:[1,0]' % (v(tm + 2 * i, 2), v(tm + 2 * i, 2)))
                    yield
            else:
                for i in range(8):
                    e('v_add_f32 %s, 1.0, %s' % (v(tm + i), v(tm + i)))
                    yield
            for i in range(8):
                e('v_rcp_f32 %s, %s' % (v(tm + i), v(tm + i)))
                yield
            for x in (tm, u):
                if packed:
                    for i in range(4):
                        e('v_pk_mul_f32 %s, %s, %s' % (v(g + 2 * i, 2), v(g + 2 * i, 2), v(x + 2 * i, 2)))
                        yield
                else:
                    for i in range(8):
                        e('v_mul_f32 %s, %s, %s' % (v(g + i), v(g + i), v(x + i)))
                        yield
            for i in range(4):
                e('v_cvt_pk_bf16_f32 %s, %s, %s' % (v(o + i), v(g + 2 * i), v(g + 2 * i + 1)))
                yield
            e('v_permlane16_swap_b32 %s, %s' % (v(o), v(o + 2)))
            yield
            e('v_permlane16_swap_b32 %s, %s' % (v(o + 1), v(o + 3)))
            yield
            out[0] = self.st(v(o, 4), 176, WS, soff, 512 * p)
            yield

    def p3(self):
        k = self.k
        e = k.e
        A1, A2, BUF = 16, 80, 128
        RA, RB = self.o('ring_a', 2), self.o('ring_b', 7)
        self.sx(sAOF, 'H2F + (r*4 + w)*40960')
        self.sx(sAOF2, 'aof + 20480')
        self.vx(178, '(l&15)*128 + (r*4 + w)*2048 + F_H2', (179,))
        e('v_add_u32 %s, 61440, %s' % (v(vA0), v(vL16)))
        e('v_add_u32 %s, %d, %s' % (v(vA1), 61440 + 65536, v(vL16)))
        k.wait(vm=self.h_h2st)
        self.flag(sFL, 16)
        self.stamp('h2 flag')
        run(self.g_ring(range(3 + RA, RB)))
        h_poll = self.poll_issue(178)
        k.c('hand-over addresses for hh')
        self.vx(176, '((l>>4)&1)*55296 + (l&15)*16 + (l>>5)*256', (177,))
        self.sx(U0, 'HHF + (r*4 + w)*110592 + c*2048')
        self.sx(U1, 'HHF + (r*4 + w)*110592 + cc*512 + 32768')
        self.sx(T2, '((r*2 + (w>>1))*32 + c*2 + (w&1))*128')
        self.sx(sFL, 'T2 + F_HH1')
        self.sx(sFL2, 'T2 + F_HH2')
        self.vx(180, '(l&7)*128 + r2*4096 + w*1024 + F_HH1', (181,))
        self.vx(182, '(l&31)*128 + r2*4096 + F_HH2', (183,))
        for jj in range(4):
            self.sx(T2, '(r2*4 + ((w + %d)&3))*55296 + HHF' % jj)
            self.sx(PB + jj, 'T2 + w*8192')
            self.sx(PB + 4 + jj, 'T2 + kq*1024')
        self.poll_check(178, h_poll)
        self.stamp('h2 seen')
        h_a = {}
        ga = self.g_act_loads(h_a)
        run(ga, 2 * self.o('pre3', 4))
        e('s_barrier')
        self.stamp('p3 start')

        def lds(slot):
            if slot < 48:
                return vL16, slot * 1024
            if slot < 112:
                return vA0, (slot - 48) * 1024
            return vA1, (slot - 112) * 1024

        def g_sync(groups, wait=None):
            if wait is not None:
                k.wait(vm=self.hring[wait])
            e('s_barrier')
            yield
            for _ in self.g_ring(groups):
                yield
        k.c('gate / up projection, first pass: four tile pairs')
        side = Side()
        side.add(ga, 2, 8)
        side.add(self.g_ring(range(RB, 9)), 6, 8)
        for ks, groups, wait in ((5, (9, 10), None), (9, (11, 12), 8), (13, (13, 14), None), (16, (), 12),
                                 (17, (15,), None)):
            side.add(g_sync(groups, wait), 16 * ks + 15, 8)
        side.add(self.g_w2_until(self.o('w2a', 24)), 16 * 16 + 4, 5)
        items = []
        for ks in range(20):
            for t in range(8):
                base, off = lds((8 * ks + t) % 144)
                items.append((base, off, [(v(A1 + 8 * t + 4 * tok, 4), ks == 0, a(8 * ks + 4 * tok, 4),
                                           (lambda kk=ks, tt=tok: h_a[(kk, tt)])) for tok in range(2)]))
        assert RB >= 6
        self.gemm(items, BUF, 8, 6, side, wgrp=2)
        self.stamp('p3 mid')
        k.c('second pass: three tile pairs, with the first epilogue inside it')
        side = Side()
        hst = [0]
        gs = self.g_silu(A1, 4, 160, 168, U0, hst, packed=False)
        side.add(gs, 4, 1)
        side.add(gs, 5, self.o('silu2', 4))

        def g_rest():
            for _ in self.g_ring((16, 17, 18, 19)):
                yield
            for _ in self.g_w2_until(self.o('w2b', 58)):
                yield
        side.add(g_rest(), 1, self.o('rests', 4))
        side.add(g_sync((), 15), 12 * 4 + 11, 1)
        side.add(g_sync((), 19), 12 * 10 + 11, 1)

        def pub():
            k.wait(vm=hst[0])
            self.flag(sFL, 177)
        side.at(self.o('pub1', 215), pub)
        items = []
        for ks in range(20):
            for t in range(6):
                base, off = lds(24 + 6 * ks + t)
                items.append((base, off, [(v(A2 + 8 * t + 4 * tok, 4), ks == 0, a(8 * ks + 4 * tok, 4), None)
                                          for tok in range(2)]))
        self.gemm(items, BUF, 8, 6, side, wgrp=2)
        self.stamp('p3 done')

    def p4(self):
        k = self.k
        e = k.e
        ACC, AB, NB = 80, 16, 16
        order = [(kk, jj) for kk in range(12) for jj in range(4)]
        order += [(kk, jj) for jj in (1, 2, 3, 0) for kk in (12, 13)]
        hs = {}
        st = {'next': 0, 'late': False}

        def issue():
            i = st['next']
            if i >= 56:
                return False
            kk, jj = order[i]
            if kk >= 8 and not st['late']:
                return False
            sb, m = (PB + jj, kk) if kk < 8 else (PB + 4 + jj, kk - 8)
            if m == 4:
                e('s_add_u32 %s, %s, 4096' % (s(sb), s(sb)))
            if kk == 13:
                e('s_cmp_lt_u32 %s, 2' % s(sW))
                e('s_cselect_b32 %s, %s, %s' % (s(sb), s(sb), s(sBIG)))
            hs[i] = self.ld(v(AB + 4 * (i % NB), 4), vL16, WS, sb, 1024 * (m & 3), sc1=True)
            st['next'] += 1
            return True
        k.c('second epilogue; the first operands of the down projection are requested inside it')
        PRE = self.o('pre4', 10)
        hst2 = [0]
        ge = self.g_silu(80, 3, 160, 168, U1, hst2)
        run(ge, self.o('e2a', 30))
        h_p1 = self.poll_issue(180)
        run(ge, self.o('e2b', 40))
        self.poll_check(180, h_p1)
        self.stamp('hh1 seen')
        for i, _ in enumerate(ge):
            if i % 4 == 0 and st['next'] < PRE:
                issue()
        while st['next'] < PRE:
            issue()
        self.stamp('hh stored')
        k.c('down projection: each wave owns a quarter of K for all 64 x 80 outputs')
        for jj in range(1, 4):
            self.vx(164 + jj, 'l16 + ((w + %d)&3)*15360 + %d' % (jj, L_RED + (jj - 1) * 5120))
        self.mv_addr(162, 163, 164)
        self.vx(164, 'l16 + w*15360 + L_RED')
        self.lane_rowseg(160, 161, 168)
        gw = self.g_w2_until(70)
        h_p2 = None
        pend = []
        for i, (kk, jj) in enumerate(order):
            if i == self.o('chk2', 24):
                self.poll_check(182, h_p2)
                st['late'] = True
                e('s_barrier')
                while st['next'] < i + PRE and issue():
                    pass
            k.wait(vm=hs[i])
            for t in range(5):
                acc = v(ACC + 20 * jj + 4 * t, 4)
                e('%s %s, %s, %s, %s' % (M16, acc, self.w2reg(5 * kk + t), v(AB + 4 * (i % NB), 4), acc if kk else '0'))
                if t == 0:
                    if i == self.o('pub2', 3):
                        k.wait(vm=hst2[0])
                        self.flag(sFL2, 177)
                    if i == self.o('iss2', 20):
                        h_p2 = self.poll_issue(182)
                    if st['next'] < i + 1 + PRE:
                        issue()
                if t == 2 and i >= self.o('w2c', 4):
                    next(gw, None)
                if pend and (i, t) >= pend[0][0]:
                    _, pj, pt = pend.pop(0)
                    self.dsw(164 + pj, v(ACC + 20 * pj + 4 * pt, 4), 1024 * pt)
            if i == 40:
                self.mv_read(192, 3, 162, 163)
            if kk == 13 and jj:
                pend += [((i + 1 + (t + 2) // 5, (t + 2) % 5), jj, t) for t in range(5)]
        assert self.w2n == 70 and not pend
        self.stamp('p4 done')
        k.c('reduce the four K quarters through LDS: wave w keeps token block w')
        self.unpack(212, X1P, 10)
        self.barrier()
        hs = []
        for jj in range(3):
            for t in range(5):
                h = self.dsr(v(16 + 20 * jj + 4 * t, 4), 164, 5120 * jj + 1024 * t)
            hs.append(h)
        for jj in range(3):
            k.wait(lg=hs[jj])
            for i in range(10):
                e('v_pk_add_f32 %s, %s, %s' % (v(ACC + 2 * i, 2), v(ACC + 2 * i, 2), v(16 + 20 * jj + 2 * i, 2)))
        for i in range(10):
            e('v_pk_fma_f32 %s, %s, %s, %s' % (v(ACC + 2 * i, 2), v(ACC + 2 * i, 2), v(192 + 2 * i, 2), v(212 + 2 * i, 2)))
        self.pack(100, ACC, 10)
        self.st(v(100, 4), 160, OUTS, sXOFF, 0, sc1=False)
        self.st(v(104, 4), 160, OUTS, sXOFF, 16, sc1=False)
        self.st(v(108, 2), 161, OUTS, sXOFF, 0, sc1=False, n=2)

    def epilogue(self):
        k = self.k
        e = k.e
        k.c('workgroup 0 records the launch tag for the next launch')
        self.sx(T2, 'sel(b + w == 0, EPOCH, BIGR)')
        self.flag(T2, 112)
        if self.ts:
            self.stamp('out issued')
            k.wait_all()
            self.stamp('end')
            self.sx(T2, '(b*4 + w)*256 + TSB')
            e('v_lshlrev_b32 v16, 2, %s' % v(vL))
            self.st(v(vTS), 16, WS, T2, 0, n=1)
        k.label('L_end')
        e('s_endpgm')

    def build(self):
        steps = [self.p0, self.p1, self.attn_out, self.p2, self.p3, self.p4]
        for i, f in enumerate(steps):
            if i > self.stop:
                break
            f()
        if self.stop < len(steps) - 1:
            self.k.wait_all(force=True)
        self.epilogue()
        body, nins, nops = self.k.text()
        head = open('cdna_kernels/%s.s.ref' % NAME).read().split('; Override launch')[0]
        src = head
        src += '; One persistent launch, 256 workgroups (one per CU); phases hand data over through d_ws with launch-tagged flags.\n'
        src += '; @launch grid=(256,1,1) block=(256,1,1) lds=%d\n' % LDS_BYTES
        src += '.amdgcn_target "amdgcn-amd-amdhsa--gfx950"\n.text\n.globl %s\n.p2align 8\n.type %s,@function\n%s:\n' % (KN, KN, KN)
        src += body
        src += 'L_code_end:\n'
        src += '''.section .rodata,"a"
.p2align 6
.amdhsa_kernel %s
  .amdhsa_next_free_vgpr 512
  .amdhsa_next_free_sgpr 102
  .amdhsa_accum_offset 256
  .amdhsa_group_segment_fixed_size 0
  .amdhsa_kernarg_size 104
  .amdhsa_user_sgpr_count 2
  .amdhsa_user_sgpr_kernarg_segment_ptr 1
  .amdhsa_system_sgpr_workgroup_id_x 1
  .amdhsa_float_denorm_mode_32 3
.end_amdhsa_kernel
''' % KN
        return src, nins, nops


if __name__ == '__main__':
    import argparse
    ap = argparse.ArgumentParser()
    ap.add_argument('-o', default='k.s')
    ap.add_argument('--stop', type=int, default=99)
    ap.add_argument('--ts', action='store_true')
    ap.add_argument('--map', default='8,8,4')
    ap.add_argument('--opt', default='')
    args = ap.parse_args()
    opt = {kv.split('=')[0]: int(kv.split('=')[1]) for kv in args.opt.split(',') if kv}
    g = Gen(args.stop, args.ts, tuple(int(x) for x in args.map.split(',')), opt)
    src, nins, nops = g.build()
    open(args.o, 'w').write(src)
    if args.ts:
        open(args.o + '.ts', 'w').write('\n'.join(g.tsnames))
    print('instructions', nins, 'hazard nops', nops, 'bytes', len(src))
```

```python
import random
import re
import layout
from asmlib import Asm, v, a, s
from layout import *
from genbase import Base
from xpr import X
import xsim

M16 = 'v_mfma_f32_16x16x32_bf16'
M32 = 'v_mfma_f32_32x32x16_bf16'

SN = dict(b=2, w=sW, r=sR, c=sC, r2=sR2, c2=sC2, loc=sLOC, BIGR=sBIG, cc=sCC, kq=sKQ, w5k=sW5K,
          T0=T0, T1=T1, T2=T2, T3=T3, T4=T4, T5=T5, T6=T6, T7=T7, U0=U0, U1=U1, U2=U2, U3=U3, U4=U4, U5=U5,
          aof=sAOF, dm=sDM, dg=sDG)
RANGE = dict(b=256, w=4, r=16, c=16, r2=32, c2=8, loc=32, cc=60, kq=54, w5k=16000)
CONST = {k: x for k, x in vars(layout).items() if isinstance(x, int) and k.isupper() and k not in SN}


class Side:
    def __init__(self):
        self.streams = []

    def add(self, gen, start, stride=1, per=1):
        self.streams.append([gen, start, stride, per])

    def at(self, slot, fn):
        def g():
            fn()
            yield
        self.add(g(), slot)

    def run(self, slot):
        for st in self.streams:
            gen, start, stride, per = st
            if gen is not None and slot >= start and (slot - start) % stride == 0:
                for _ in range(per):
                    try:
                        next(gen)
                    except StopIteration:
                        st[0] = None
                        break

    def drain(self):
        for st in self.streams:
            if st[0] is not None:
                for _ in st[0]:
                    pass
                st[0] = None


def run(gen, n=None):
    for i, _ in enumerate(gen):
        if n is not None and i + 1 >= n:
            break


class Gen(Base):
    def __init__(self, stop=99, ts=False, mapping=(8, 8, 4), opt=None, probe=None):
        self.k = Asm()
        self.stop = stop
        self.ts = ts
        self.map1, self.map2, self.map3 = mapping
        self.nts = 0
        self.tsnames = []
        self.opt = opt or {}
        self.probe = probe
        self.rng = random.Random(1)

    def o(self, name, default):
        return self.opt.get(name, default)

    def _x(self, vec, dst, text, tmp, names):
        lines = []
        x = X(lines.append, SN, dict(l=vL, tid=vTID, l16=vL16), CONST, XT)
        extra = {n: ('v', r) for n, r in names.items()}
        if vec:
            x.vx(dst, text, tmp, **extra)
        else:
            x.sx(dst, text)
        for _ in range(6):
            env = dict(CONST)
            S, V = {}, {}
            for n, r in SN.items():
                env[n] = BIG if n == 'BIGR' else self.rng.randrange(RANGE.get(n, 200))
                S['s%d' % r] = env[n]
            V['v%d' % vL] = list(range(64))
            V['v%d' % vL16] = [16 * i for i in range(64)]
            V['v%d' % vTID] = [64 * env['w'] + i for i in range(64)]
            for n, r in names.items():
                V['v%d' % r] = [self.rng.randrange(300) for _ in range(64)]
            V0 = {kk: list(x_) for kk, x_ in V.items()}
            xsim.run(lines, S, V)
            env['sel'] = lambda p, y, z: y if p else z
            env['min'] = min
            for ln in range(64 if vec else 1):
                env.update(l=ln, l16=16 * ln, tid=64 * env['w'] + ln)
                for n, r in names.items():
                    env[n] = V0['v%d' % r][ln]
                xsim.U.wide = False
                ref = xsim.U(eval(text, {n: (xsim.U(y) if isinstance(y, int) else y) for n, y in env.items()})).v
                got = V['v%d' % dst][ln] if vec else S['m0' if dst == 'm0' else 's%d' % dst]
                assert got == ref or (vec and xsim.U.wide), (text, got, ref, lines)
        for ln in lines:
            self.k.e(ln)

    def sx(self, dst, text):
        self._x(False, dst, text, (), {})

    def vx(self, dst, text, tmp=(), **names):
        self._x(True, dst, text, tmp, names)

    def coords(self, dr, dc, ncol, C):
        lc, nx = C.bit_length() - 1, ncol // C
        self.sx(dr, '((b&7)>>%d)*%d + (loc>>%d)' % (nx.bit_length() - 1, 32 // C, lc))
        self.sx(dc, '(b&%d)*%d + (loc&%d)' % (nx - 1, C, C - 1) if nx > 1 else 'loc&%d' % (C - 1))

    def stamp(self, name):
        if self.probe:
            k = self.k
            if name == 'top':
                k.e('s_memrealtime %s' % s(sTS, 2))
                k.wait_all(vm=False, lg=True, force=True)
            elif name == self.probe[0]:
                k.wait_all(vm=False, lg=True)
                k.e('s_memrealtime %s' % s(XT[0], 2))
                k.wait_all(vm=False, lg=True, force=True)
                k.e('s_sub_u32 %s, %s, %s' % (s(sTS + 1), s(XT[0]), s(sTS)))
                k.e('s_mul_i32 %s, %s, %d' % (s(sTS + 1), s(sTS + 1), self.probe[1]))
            return
        if not self.ts:
            return
        k = self.k
        k.wait_all(vm=False, lg=True)
        k.e('s_memrealtime %s' % s(sTS, 2))
        k.wait_all(vm=False, lg=True, force=True)
        k.e('v_writelane_b32 %s, %s, %d' % (v(vTS), s(sTS), self.nts))
        self.tsnames.append(name)
        self.nts += 1
        clk = ('top', 'p3 start', 'p3 done', 'end')
        if name in clk:
            k.e('s_memtime %s' % s(sTS, 2))
            k.wait_all(vm=False, lg=True, force=True)
            k.e('v_writelane_b32 %s, %s, %d' % (v(vTS), s(sTS), 60 + clk.index(name)))

    def poll_issue(self, t):
        return self.k.vm('buffer_load_dword %s, %s, %s, 0 offen sc1' % (v(t + 1), v(t), s(WS, 4)))

    def spin(self, first_wait, check, reissue):
        k = self.k
        e = k.e
        top, done = k.newlabel('spin'), k.newlabel('seen')
        e('s_mov_b32 %s, %d' % (s(sCNT), POLL_LIMIT))
        k.wait(vm=first_wait)
        k.label(top)
        check()
        e('s_cmp_eq_u64 vcc, 0')
        e('s_cbranch_scc1 %s' % done)
        state = (k.vm_seq, k.vm_done)
        if self.o('slp', 1):
            e('s_sleep %d' % self.o('slp', 1))
        reissue()
        k.wait_all(vm=True, lg=False, force=True)
        k.vm_seq, k.vm_done = state
        e('s_sub_u32 %s, %s, 1' % (s(sCNT), s(sCNT)))
        e('s_cbranch_scc0 %s' % top)
        k.label(done)

    def poll_check(self, t, h):
        self.spin(h, lambda: self.k.e('v_cmp_ne_u32 vcc, %s, %s' % (s(TAG), v(t + 1))), lambda: self.poll_issue(t))

    def tag_check(self, regs, t):
        e = self.k.e
        for i, r in enumerate(regs):
            e('v_xor_b32 %s, %s, %s' % (v(r), s(sTB + (i & 3)), v(r)))
            if i == 1:
                e('v_or_b32 %s, %s, %s' % (v(t), v(r - 1), v(r)))
            elif i & 1:
                e('v_or3_b32 %s, %s, %s, %s' % (v(t), v(r - 1), v(r), v(t)))
        e('v_and_b32 %s, 0xff, %s' % (v(t), v(t)))
        e('v_cmp_ne_u32 vcc, 0, %s' % v(t))

    def flag(self, off, tmp):
        k = self.k
        k.e('v_mov_b32 %s, %s' % (v(tmp), s(TAG)))
        k.e('s_mov_b64 exec, 1')
        h = k.vm('buffer_store_dword %s, off, %s, %s sc1' % (v(tmp), s(WS, 4), s(off)))
        k.e('s_mov_b64 exec, -1')
        return h

    def gemm(self, items, buf, nbuf, pd, side=None, wgrp=1):
        k = self.k
        hs = {}

        def issue(i):
            if i < len(items):
                hs[i] = self.dsr(v(buf + 4 * (i % nbuf), 4), items[i][0], items[i][1])
        for i in range(pd):
            issue(i)
        slot = 0
        for i, (_, _, mms) in enumerate(items):
            for j, (acc, first, other, hv) in enumerate(mms):
                k.wait(vm=hv() if hv else None, lg=hs[min(i + wgrp - 1 - i % wgrp, len(items) - 1)])
                k.e('%s %s, %s, %s, %s' % (M16, acc, v(buf + 4 * (i % nbuf), 4), other, '0' if first else acc))
                if j == 0:
                    issue(i + pd)
                if side:
                    side.run(slot)
                slot += 1
        if side:
            side.drain()

    def g_lin_dma(self, n, out=None):
        e = self.k.e
        for j in range(n):
            if j & 3 == 0:
                if j:
                    e('s_add_u32 %s, %s, 4096' % (s(sDG), s(sDG)))
                    e('s_add_u32 %s, %s, 4096' % (s(sDM), s(sDM)))
                e('s_mov_b32 m0, %s' % s(sDM))
            h = self.dma(vL16, WS, sDG, 1024 * (j & 3), sc1=True)
            if out is not None:
                out[0] = h
            yield

    def g_act_loads(self, hs):
        e = self.k.e
        for ks in range(20):
            if ks and ks & 3 == 0:
                e('s_add_u32 %s, %s, 4096' % (s(sAOF), s(sAOF)))
                e('s_add_u32 %s, %s, 4096' % (s(sAOF2), s(sAOF2)))
            for tok in range(2):
                hs[(ks, tok)] = self.ld(a(8 * ks + 4 * tok, 4), vL16, WS, sAOF + tok, 1024 * (ks & 3), sc1=True)
                yield

    def g_dma160(self, srd, ssrc, vsrc, lbase, rowbytes, out):
        e = self.k.e
        for j in range(5):
            e('s_add_u32 m0, %s, %d' % (s(sW5K), lbase + 1024 * j))
            out[0] = self.dma(vsrc + (j & 1), srd, ssrc)
            if j < 4:
                e('s_add_u32 %s, %s, %d' % (s(ssrc), s(ssrc), 8 * rowbytes))
            yield

    def src160(self, d, rowbytes, t):
        self.vx(d, '(l>>3)*%d + ((l&7)^(((l>>4)&1)*2)^((w&1)*4))*16' % rowbytes, (t, t + 1))
        self.k.e('v_xor_b32 %s, 64, %s' % (v(d + 1), v(d)))

    def tr160(self, d, t):
        self.vx(d, '((l>>4)*8 + ((l>>2)&3))*128 + ((((l>>4)&1)*2 + ((l>>3)&1))^w)*32 + (l&3)*8', (t, t + 1, t + 2))

    def g_gemv(self, vtr, lbase, lsilu, fr, t):
        k = self.k
        e = k.e
        hs = []
        e('v_and_b32 %s, 48, %s' % (v(t), v(vL)))
        e('v_add_u32 %s, %d, %s' % (v(t + 1), lsilu, v(t)))
        for ks in range(5):
            self.dstr(v(fr + 8 * ks, 2), vtr, lbase + ks * 4096)
            self.dstr(v(fr + 8 * ks + 2, 2), vtr, lbase + ks * 4096 + 512)
            hs.append(self.dsr(v(fr + 8 * ks + 4, 4), t + 1, ks * 64))
            yield
        d = v(t + 2, 4)
        for ks in range(5):
            k.wait(lg=hs[ks])
            e('%s %s, %s, %s, %s' % (M16, d, v(fr + 8 * ks, 4), v(fr + 8 * ks + 4, 4), d if ks else '0'))
            yield
        yield
        yield
        yield
        for i in range(4):
            e('v_add_u32 %s, 0x80, %s' % (v(t + 2 + i), v(t + 2 + i)))
            e('v_and_b32 %s, 0xffffff00, %s' % (v(t + 2 + i), v(t + 2 + i)))
            e('v_or_b32 %s, %s, %s' % (v(t + 2 + i), s(sTB + i), v(t + 2 + i)))
            yield
        e('s_mov_b32 exec_lo, 0x00010001\ns_mov_b32 exec_hi, 0x00010001')
        self.h_gemv = self.st(d, t, WS, sJ1)
        e('s_mov_b64 exec, -1')
        yield

    def silu_c(self, d, t):
        e = self.k.e
        self.k.wait(vm=self.h_c)
        e('v_lshlrev_b32 %s, 16, %s' % (v(d), v(d)))
        e('v_mul_f32 %s, 0xbfb8aa3b, %s' % (v(t), v(d)))
        e('v_exp_f32 %s, %s' % (v(t), v(t)))
        e('v_add_f32 %s, 1.0, %s' % (v(t), v(t)))
        e('v_rcp_f32 %s, %s' % (v(t), v(t)))
        e('v_mul_f32 %s, %s, %s' % (v(d), v(t), v(d)))
        e('v_cvt_pk_bf16_f32 %s, %s, %s' % (v(d), v(d), v(d)))

    def head(self):
        k = self.k
        e = k.e
        e('s_cmp_ge_u32 s2, 256')
        e('s_cbranch_scc1 L_end')
        e('s_getpc_b64 %s' % s(T0, 2))
        k.label('L_pc')
        for r, off in ((WM, 72), (CS, 64), (WQ, 8), (WP, 16), (XS, 0), (WS, 96), (SE, 24), (S2, 56), (OUTS, 80)):
            e('s_load_dwordx2 %s, s[0:1], %d' % (s(r, 2), off))
        e('s_load_dwordx4 %s, s[0:1], 40' % s(PB, 4))
        e('s_lshr_b32 %s, s2, 3' % s(sLOC))
        k.c('warm L2 with this kernel\'s code: each workgroup reads a 2 KiB slice')
        e('s_lshl_b32 %s, %s, 11' % (s(T2), s(sLOC)))
        e('v_lshl_add_u32 v16, v0, 3, %s' % s(T2))
        e('v_min_u32 v16, L_code_end-L_pc-8, v16')
        e('v_mov_b32 v19, %s' % s(T1))
        e('v_add_co_u32 v18, vcc, %s, v16' % s(T0))
        e('v_addc_co_u32 v19, vcc, 0, v19, vcc')
        k.vm('global_load_dwordx2 v[214:215], v[18:19], off')
        if self.ts:
            e('v_mov_b32 %s, 0' % v(vTS))
        self.stamp('top')
        e('v_lshrrev_b32 v16, 6, v0')
        e('v_and_b32 %s, 63, v0' % v(vL))
        e('v_readfirstlane_b32 %s, v16' % s(sW))
        e('v_lshlrev_b32 %s, 4, %s' % (v(vL16), v(vL)))
        e('s_mov_b32 %s, 0x%x' % (s(sBIG), BIG))
        self.srd(CS, 1280)
        self.srd(XS, 2048 * 1280)
        self.srd(WM, 640 * 3840 * 2)
        self.coords(sR, sC, 16, self.map1)
        self.sx(sW5K, 'w*5120')
        e('v_lshlrev_b32 v212, 1, v0')
        self.vx(30, '(l&7)*1280 + (l>>3)*16', (16, 17))
        self.sx(T6, '(r*16 + c)*10240 + w*128')
        self.sx(T7, 'sel(w<2, T6, BIGR)')

    def setup_rest(self):
        k = self.k
        e = k.e
        e('s_load_dword %s, %s, %d' % (s(TAG), s(WS, 2), EPOCH))
        self.srd(WS, WS_END)
        k.c('touch the lines that are polled later and this workgroup\'s kv slot')
        self.vx(16, 'sel(l<8, (b*32 + w*8 + l)*128 + %d, (c*16 + r)*KPS + (w*7 + min(l,14))*128 + %d)' % (PB0, KP - 1024),
                (17, 18, 19, 22))
        e('s_mov_b64 exec, 0x7fff')
        k.vm('buffer_load_dword v213, v16, %s, 0 offen' % s(WS, 4))
        e('s_mov_b64 exec, -1')
        e('s_mov_b32 %s, 0x3fb8aa3b\ns_mov_b32 %s, 0x3fb8aa3b' % (s(LOG2E), s(LOG2E + 1)))
        self.srd(OUTS, 2048 * 1280)
        self.srd(SL, 640 * 3456)
        self.coords(sR2, sC2, 8, self.map2)
        e('s_bitcmp1_b32 s2, 0')
        e('s_cselect_b64 %s, %s, %s' % (s(SL, 2), s(PB + 2, 2), s(PB, 2)))
        self.sx(sJ1, 'sel(kq<4, MODP + kq*15360 + cc*256 + w*64, BIGR)')
        self.tr160(208, 16)
        e('s_waitcnt lgkmcnt(0)')
        e('s_add_u32 %s, %s, 0x9e3779b9' % (s(TAG), s(TAG)))
        e('s_mov_b32 %s, %s' % (s(TAG + 1), s(TAG)))
        e('s_and_b32 %s, %s, 0xff' % (s(sTB), s(TAG)))
        e('s_bfe_u32 %s, %s, 0x80008' % (s(sTB + 1), s(TAG)))
        e('s_bfe_u32 %s, %s, 0x80010' % (s(sTB + 2), s(TAG)))
        e('s_lshr_b32 %s, %s, 24' % (s(sTB + 3), s(TAG)))

    def load_c(self):
        self.sx(T2, 'kq*320')
        self.h_c = self.k.vm('buffer_load_ushort v209, v212, %s, %s offen' % (s(CS, 4), s(T2)))

    def load_x(self):
        self.ld(v(32, 4), 30, XS, T6, 0)
        self.ld(v(36, 4), 30, XS, T6, 512)
        self.h_x = self.ld(v(40, 4), 30, XS, T7, 1024)

    def ln_partial(self):
        k = self.k
        e = k.e
        XN = 176
        k.c('partial sums and sums of squares of the eight rows')
        k.wait(vm=self.h_x)
        self.unpack(XN, 32, 12)
        e('v_pk_add_f32 v[16:17], %s, %s' % (v(XN, 2), v(XN + 2, 2)))
        e('v_pk_mul_f32 v[18:19], %s, %s' % (v(XN, 2), v(XN, 2)))
        for i in range(1, 12):
            if i > 1:
                e('v_pk_add_f32 v[16:17], v[16:17], %s' % v(XN + 2 * i, 2))
            e('v_pk_fma_f32 v[18:19], %s, %s, v[18:19]' % (v(XN + 2 * i, 2), v(XN + 2 * i, 2)))
        e('v_add_f32 v16, v16, v17')
        e('v_add_f32 v17, v18, v19')
        self.xsum(16, 18, (8, 16, 32))
        self.xsum(17, 18, (8, 16, 32))
        self.vx(20, '(l&7)*32 + w*8', (18,))
        self.dsw(20, 'v[16:17]', L_LNR, n=2)

    def role_a(self):
        k = self.k
        e = k.e
        k.c('role A: shift/scale GEMV first, then relayout of wo and w2 (32 rows x 320 columns per unit)')
        self.sx(T2, 'b*3277>>16')
        self.sx(T3, 'b - T2*20')
        self.sx(U1, '(T2*4 + w)*307200 + T3*128')
        self.src160(210, 7680, 16)
        e('s_waitcnt lgkmcnt(0)')
        self.sx(sKQ, 'T2')
        self.sx(sCC, 'T3')
        self.stamp('entry')
        self.load_c()
        hw = [0]
        run(self.g_dma160(WM, U1, 210, L_J1, 7680, hw))
        self.load_x()
        self.srd(S2, 1728 * 1280)
        e('s_cmp_lt_u32 s2, 40')
        e('s_cselect_b64 %s, %s, %s' % (s(SE, 2), s(SE, 2), s(S2, 2)))
        self.csel(SE + 2, 640 * 1280, 1728 * 1280)
        e('s_mov_b32 %s, 0x20000' % s(SE + 3))
        for j in range(5):
            e('v_add_u32 v16, %d, %s' % (64 * j, v(vL)))
            self.vx(200 + j, 'q*16 + ((q*1639)>>16)*640', (17,), q=16)
        hu = [0, 0]
        for i, (srd, lb, ssrc, sdst) in enumerate(((SE, L_SE, U2, U4), (S2, L_SE2, U3, U5))):
            if i == 0:
                self.sx(T2, 'sel(b<40, b, b - 40)')
                self.sx(T3, 'sel(b<40, 20, 54)')
                self.sx(T5, 'sel(b<40, WOF, W2F)')
            else:
                self.sx(T2, '151 - b')
                self.sx(T3, '54')
                self.sx(T5, 'W2F')
            self.sx(T4, 'sel(T2>=T3, T3, 0)')
            self.sx(T0, 'T2 - T4')
            self.sx(ssrc, 'sel(T0<T3, (T0*4 + w)*10240 + sel(T4>0, 640, 0), BIGR)')
            self.sx(sdst, 'sel(T0<T3, (T4*4 + T0)*5120 + w*256 + T5, BIGR)')
            if i == 0:
                self.sx(T1, 'T3*5120')
            for j in range(5):
                e('s_add_u32 m0, %s, %d' % (s(sW5K), lb + 1024 * j))
                hu[i] = self.dma(200 + j, srd, ssrc)
        self.setup_rest()
        self.silu_c(209, 16)
        self.dsw(212, v(209), L_SILU, n=0)
        k.wait(vm=hw[0])
        self.barrier()
        self.stamp('first landed')
        run(self.g_gemv(208, L_J1, L_SILU, 44, 24))
        self.stamp('first stored')
        self.ln_partial()
        self.vx(16, '((l>>2)&3)*640 + (l>>4)*160 + (l&3)*40 + w5k', (17, 18))
        self.vx(17, 'q + (l&1)*8', (19,), q=16)
        self.vx(18, 'q + ((l&1)^1)*32', (19,), q=16)
        self.vx(19, '(l>>4)*T1 + (l&15)*16', (20,))
        self.vx(20, '(l>>4)*276480 + (l&15)*16', (21,))
        e('v_add_u32 v21, %d, v17' % L_SE2)
        e('v_add_u32 v22, %d, v18' % L_SE2)
        for i in range(2):
            k.wait(vm=hu[i])
            hs = []
            for t in range(5):
                for kh in range(2):
                    base = (17, 21)[i] + (t == 4)
                    h = self.dstr(v(96 + 20 * i + 4 * t + 2 * kh, 2), base,
                                  (L_SE if i == 0 else 0) + 2560 * kh + (8 * t if t < 4 else 0))
                hs.append(h)
            for t in range(5):
                k.wait(lg=hs[t])
                if t == 4:
                    e('s_add_u32 %s, %s, 4096' % (s(U4 + i), s(U4 + i)))
                self.st(v(96 + 20 * i + 4 * t, 4), 19 + i, WS, U4 + i, 1024 * t if t < 4 else 0)
        e('s_mov_b32 %s, %s' % (s(sFL), s(sBIG)))
        e('s_mov_b32 %s, %s' % (s(sJ1), s(sBIG)))
        e('s_mov_b32 %s, %s' % (s(U0), s(sBIG)))

    def role_b(self):
        k = self.k
        e = k.e
        k.c('role B: fold w_phi into 32 rows of four heads and transpose them to fragments')
        self.srd(WQ, 640 * 1920 * 2)
        self.srd(WP, 25600)
        self.sx(T4, 'b - 96')
        self.sx(T0, 'T4*3277>>16')
        self.sx(T1, 'T4 - T0*20')
        self.sx(T2, 'T1*122880 + T0*160')
        self.sx(T3, 'sel(w==3, BIGR, T2)')
        for j in range(4):
            self.vx(16, 'l + w*256 + %d' % (64 * j))
            self.vx(17, '(q*2185)>>16', q=16)
            self.vx(18, 'q - p*30', (19,), q=16, p=17)
            self.vx(24 + j, 'p*3840 + m*16 + ((m*26)>>8)*1120', (19,), p=17, m=18)
        self.sx(T5, '(T0*2 + (w>>1))*1600 + (w&1)*1024')
        e('s_waitcnt lgkmcnt(0)')
        self.stamp('entry')
        for j in range(4):
            self.sx('m0', 'w*4096 + %d' % (L_FR + 1024 * j))
            self.dma(24 + j, WQ, T2 if j < 3 else T3)
        self.sx('m0', '(w>>1)*3072 + (w&1)*1024 + L_WPHI')
        h_wphi = self.dma(vL16, WP, T5)
        self.load_x()
        self.sx(sKQ, 'T4*1639>>16')
        self.sx(sCC, 'T4 - kq*40 + 20')
        self.load_c()
        self.sx(U0, '(kq*4 + w)*307200 + cc*128')
        self.src160(210, 7680, 16)
        self.setup_rest()
        k.c('identity matrix and zero words, one copy per head pair')
        self.vx(16, 'q - ((q*3121)>>16)*21', (17,), q=212)
        self.vx(18, 'sel(tid<200, sel(m==0, 0x3f80, sel(m==20, 0x3f800000, 0)), 0)', (17, 19, 20, 21, 22, 23), m=16)
        e('v_lshlrev_b32 v19, 2, v0')
        self.dsw(19, v(18), L_WPHI + 2048, n=1)
        self.dsw(19, v(18), L_WPHI + 3072 + 2048, n=1)
        k.c('operand addresses: tile 0 = k/v tile w; tile 1 = k/v tile 4 (wave 0) or q tile w-1')
        BA, AA = 152, 164
        self.vx(20, '(l>>4)*8 + ((l>>2)&3) - ((l>>1)&1)*20', (16, 17))
        self.vx(23, 'q - (l&1)*40', (16,), q=20)
        self.vx(22, 'sel((l&1)==1, 2048, ((l>>1)&1)*800)', (16, 17, 18, 19))
        self.vx(21, 'sel(w==0, q + 32, ((l>>1)&1)*800 + (l&1)*24 + w*8 - 8)', (16, 17, 18, 19), q=22)
        self.vx(20, 'sel(w==0, p, q + (l&1)*sel(w==3, 4096, 0))', (16, 17, 18, 19), q=20, p=23)
        self.vx(22, 'q + w*8', q=22)
        e('v_mov_b32 v29, %d' % (2048 + 800))
        for ti, (dreg, breg) in enumerate(((23, 22), (20, 21))):
            for st in range(3):
                for kh in range(2):
                    o = BA + 6 * ti + 2 * st + kh
                    e('v_add_u32 v17, %d, %s' % (32 * st + 4 * kh, v(dreg)))
                    e('v_mad_u32_u24 %s, v17, 40, %s' % (v(o), v(breg)))
                    e('v_cmp_gt_u32 vcc, 20, v17')
                    e('v_cndmask_b32 %s, v29, %s, vcc' % (v(o), v(o)))
        self.vx(17, '((l&3) + ((l>>2)&3)*8)*480 + (l>>4)*16', (16, 18))
        self.vx(AA, 'q + 160', q=17)
        self.vx(AA + 1, 'q + sel(l<16, 224, 304)', (16, 18, 19, 20), q=17)
        self.vx(AA + 2, 'q + 368', q=17)
        for st in range(3):
            self.vx(AA + 3 + st, 'sel(w==0, p, q + %d)' % (64 * min(st, 1)), (16, 18, 19, 20), q=17, p=AA + st)
        self.sx(T2, 'WF + T0*327680')
        self.sx(T4, '(T1*5 + 60 + w)*1024 + T2')
        self.sx(T5, 'sel(w==0, T1*5 + 64, T1*3 + w - 1)*1024 + T2')
        self.sx(sFL, 'sel(w==0, F_WP + (T0*20 + T1)*128, BIGR)')
        k.wait(vm=h_wphi)
        self.barrier()
        self.stamp('first landed')
        hb = {}
        for cp in range(2):
            for ti in range(2):
                for st in range(3):
                    B, A = 44 + 24 * cp + 12 * ti + 4 * st, (92, 216)[cp] + 24 * ti + 8 * st
                    if cp == 1 and ti == 1 and st == 2:
                        A = 140
                    for kh in range(2):
                        self.dstr(v(B + 2 * kh, 2), BA + 6 * ti + 2 * st + kh, L_WPHI + 3072 * cp)
                    for hf in range(2):
                        h = self.dsr(v(A + 4 * hf, 4), AA + 3 * ti + st, L_FR + 80 * cp + 1920 * hf)
                    hb[(cp, ti, st)] = (h, A, B)
                    if cp == 1 or ti == 1:
                        self.fold_mm(hb, 6 * cp + 3 * ti + st - 3)
        for i in range(9, 12):
            self.fold_mm(hb, i)
        self.silu_c(209, 16)
        for cp in range(2):
            for ti in range(2):
                o = 44 + 8 * cp + 4 * ti
                self.pack(o, 176 + 16 * cp + 8 * ti, 4)
                self.st(v(o, 4), vL16, WS, T4 + ti)
                if cp == 0:
                    e('s_add_u32 %s, %s, 163840' % (s(T4 + ti), s(T4 + ti)))
        self.stamp('first stored')
        self.ln_partial()

    def fold_mm(self, hb, i):
        cp, rest = divmod(i, 6)
        ti, st = divmod(rest, 3)
        h, A, B = hb[(cp, ti, st)]
        self.k.wait(lg=h)
        for hf in range(2):
            d = v(176 + 16 * cp + 8 * ti + 4 * hf, 4)
            self.k.e('%s %s, %s, %s, %s' % (M16, d, v(A + 4 * hf, 4), v(B, 4), d if st else '0'))

    def p0(self):
        k = self.k
        e = k.e
        self.head()
        e('s_cmp_ge_u32 s2, 96')
        e('s_cbranch_scc1 L_role_b')
        state = (k.vm_seq, k.vm_done, k.lg_seq, k.lg_done, self.nts, list(self.tsnames))
        self.role_a()
        k.wait_all(vm=False, lg=True)
        e('s_branch L_join')
        k.label('L_role_b')
        k.vm_seq, k.vm_done, k.lg_seq, k.lg_done, self.nts, self.tsnames = state
        self.role_b()
        k.wait_all(vm=False, lg=True)
        k.label('L_join')
        self.make_h()

    def make_h(self):
        k = self.k
        e = k.e
        XN = 176
        k.c('gather shift/scale for this wave\'s columns')
        self.vx(19, '(l>>5)*2560 + ((l>>4)&1)*1024 + (l&15)*16', (16, 17))
        self.vx(20, '((l>>4)&1)*2560 + (l&15)*16 + sel(w<2, 2048, 0)', (16, 17))
        for kq in range(4):
            self.sx(PB + kq, 'w*256 + %d' % (MODP + 15360 * kq))

        def issue():
            for kq in range(4):
                self.ld(v(64 + 4 * kq, 4), 19, WS, PB + kq, 0, sc1=True)
                h = self.ld(v(80 + 4 * kq, 4), 20, WS, PB + kq, 0, sc1=True)
            return h
        h = issue()
        self.sx(T6, 'w*1536 + L_SCSH')
        self.vx(21, '(l>>5)*768 + ((l>>4)&1)*256 + (l&15)*16 + T6', (16, 17))
        self.vx(22, '((l>>4)&1)*768 + (l&15)*16 + T6', (16, 17))
        self.vx(16, 'l>>5')
        self.vx(17, '(l>>4)&1')
        e('v_cvt_f32_u32 v26, v16')
        e('v_cvt_f32_u32 v28, v17')
        self.vx(24, '(l>>3)*32 + T6', (16,))
        self.vx(23, '(l>>3)*256 + (l&7)*16', (16,))
        self.vx(25, '(l&7)*32', (16,))
        self.vx(250, 'min(l,19)*128 + (c>>1)*2560 + F_WP', (16,))
        self.sx(T2, 'HF + (r*8 + (c>>1))*20480 + (c&1)*128 + w*2048')
        self.sx(T3, 'T2 + 8192')
        self.sx(T4, 'sel(w<2, T2 + 16384, BIGR)')
        self.sx(sFL2, 'F_H + ((r*4 + (c>>2))*16 + (c&3)*4 + w)*128')
        self.spin(h, lambda: self.tag_check(list(range(64, 96)), 16), issue)
        self.stamp('mod seen')
        e('s_barrier')
        self.dsr(v(56, 4), 25, L_LNR)
        hl = self.dsr(v(60, 4), 25, L_LNR + 16)
        self.flag(sFL, 16)
        self.round_mod(44, 64, 26)
        self.dsw(21, v(44, 4))
        self.round_mod(48, 80, 28)
        self.dsw(22, v(48, 4), 512)
        hs = []
        for j in range(3):
            self.dsr(v(96 + 16 * j, 4), 24, 256 * j)
            self.dsr(v(100 + 16 * j, 4), 24, 256 * j + 16)
            self.dsr(v(104 + 16 * j, 4), 24, 768 + 256 * j)
            hs.append(self.dsr(v(108 + 16 * j, 4), 24, 768 + 256 * j + 16))
        k.wait(lg=hl)
        e('v_pk_add_f32 v[56:57], v[56:57], v[58:59]')
        e('v_pk_add_f32 v[60:61], v[60:61], v[62:63]')
        e('v_pk_add_f32 v[56:57], v[56:57], v[60:61]')
        e('v_mul_f32 v56, 0x3acccccd, v56')
        e('v_mul_f32 v58, v56, v56')
        e('v_mov_b32 v59, 0x3acccccd')
        e('v_fma_f32 v57, v57, v59, -v58')
        e('v_max_f32 v57, 0, v57')
        e('v_add_f32 v57, 0x3727c5ac, v57')
        e('v_rsq_f32 v58, v57')
        e('v_mul_f32 v60, v56, v58')
        for i in range(12):
            e('v_pk_fma_f32 %s, %s, v[58:59], v[60:61] op_sel_hi:[1,0,0] neg_lo:[0,0,1] neg_hi:[0,0,1]'
              % (v(XN + 2 * i, 2), v(XN + 2 * i, 2)))
        for j in range(3):
            k.wait(lg=hs[j])
            for i in range(4):
                e('v_pk_fma_f32 %s, %s, %s, %s' % (v(XN + 8 * j + 2 * i, 2), v(XN + 8 * j + 2 * i, 2),
                                                 v(104 + 16 * j + 2 * i, 2), v(96 + 16 * j + 2 * i, 2)))
            self.pack(52 + 4 * j, XN + 8 * j, 4)
            h_st = self.st(v(52 + 4 * j, 4), 23, WS, T2 + j)
        h_wp = self.poll_issue(250)
        k.c('addresses for the first projection')
        self.sx(T7, 'WF + c*163840')
        self.sx(sDM, 'w*25600 + L_X')
        self.sx(sDG, 'T7 + dm')
        self.sx(sAOF, 'HF + (r*4 + w)*40960')
        self.sx(sAOF2, 'aof + 20480')
        self.vx(252, '(l&15)*128 + (r*4 + w)*2048 + F_H', (16,))
        k.wait(vm=h_st)
        self.flag(sFL2, 16)
        self.stamp('h flag')
        self.poll_check(250, h_wp)
        self.stamp('wp seen')

    def p1(self):
        k = self.k
        e = k.e
        k.c('folded k/v weights -> LDS')
        gx = self.g_lin_dma(25)
        run(gx, 10)
        k.c('relayout unit of w1/w3 (160 rows x 64 columns), loaded after the first pass')
        self.sx(T0, 'b>>1')
        self.sx(T2, 'T0*2428>>16')
        self.sx(T3, 'T0 - T2*27')
        self.sx(T4, 'w*2 + (b&1)')
        self.sx(U1, 'sel(b<216, (T2*4 + w)*138240 + T3*128, BIGR)')
        self.sx(T5, '((T3*4 + T2)*40 + T4)*1024 + W13A')
        self.sx(T6, '(T2*440 + T3*8 + T4)*1024 + %d' % (W13B - 128 * 1024))
        self.sx(U2, 'sel(b<216, sel(T3<16, T5, T6), BIGR)')
        self.sx(U3, 'sel(T3<16, 8192, 90112)')
        self.src160(206, 3456, 16)
        self.sx(sFL, 'sel(w==0, sel(b<40, F_WO + b*128, BIGR), BIGR)')
        self.vx(250, 'min(l,19)*128 + (c2>>2)*2560 + F_WO', (16,))
        e('v_add_u32 %s, %d, %s' % (v(vA0), L_X, v(vL16)))
        e('v_add_u32 %s, %d, %s' % (v(vA1), L_X + 65536, v(vL16)))
        run(gx)
        h_poll = self.poll_issue(252)
        self.sx(sDM, 'w*15360')
        self.sx(sDG, 'T7 + dm')
        self.poll_check(252, h_poll)
        self.stamp('h seen')
        h_a = {}
        ga = self.g_act_loads(h_a)
        run(ga, 2 * self.o('pre1', 4))
        e('s_barrier')
        self.flag(sFL, 112)
        self.stamp('p1 start')
        ACC, QA, BUF = 16, 56, 80
        k.c('projection to k and v')
        side = Side()
        side.add(ga, 1, 5)
        hy, hr = [0], [0]
        side.add(self.g_lin_dma(15, hy), self.o('y0', 163), self.o('ys', 3))
        items = []
        for ks in range(20):
            for t in range(5):
                n = 5 * ks + t
                items.append((vA0 if n < 64 else vA1, (n % 64) * 1024,
                              [(v(ACC + 20 * tok + 4 * t, 4), ks == 0, a(8 * ks + 4 * tok, 4),
                                (lambda kk=ks, tt=tok: h_a[(kk, tt)])) for tok in range(2)]))
        self.gemm(items, BUF, 8, 6, side, wgrp=2)
        e('s_barrier')
        self.stamp('pass a done')
        k.c('feature map of k, staged with v as [token][phi 40 | v 20 | 1 | 0 0 0]')
        for u in range(20):
            e('v_permlane16_swap_b32 %s, %s' % (v(ACC + u), v(ACC + 20 + u)))
        E, SD, TM = 112, 152, 184
        mark = len(k.ins)
        self.softmax(ACC, E, SD, TM)
        body = k.ins[mark:]
        del k.ins[mark:]

        def g_raw():
            for _ in self.g_dma160(SL, U1, 206, L_RS, 3456, hr):
                yield
            for _ in self.g_dma160(WM, U0, 210, L_J1B, 7680, hr):
                yield
        gr = g_raw()
        for i, ins in enumerate(body):
            k.ins.append(ins)
            if i % self.o('raws', 12) == 6:
                next(gr, None)
        run(gr)
        h_wo = self.poll_issue(250)
        self.pack(SD + 20, ACC + 20, 10)
        e('v_mov_b32 %s, 0x3f80' % v(SD + 30))
        e('v_mov_b32 %s, 0' % v(SD + 31))
        self.vx(192, '(l>>5)*16384 + (l&31)*128 + (l&7)*16 + w*4096 + L_STG', (193,))
        for p in range(8):
            if p:
                e('v_xor_b32 %s, %d, v192' % (v(192 + p), 16 * p))
            self.dsw(192 + p, v(SD + 4 * p, 4))
        e('v_add_u32 v212, %d, v212' % L_SILU2)
        self.dsw(212, v(209), 0, n=0)
        self.vx(16, '(l>>2)*128 + (((l>>2)&7)^((l>>1)&1))*16 + (l&1)*8 + (w>>1)*16384 + L_STG', (17, 18))
        e('v_xor_b32 v17, 32, v16')
        e('v_xor_b32 v18, 64, v16')
        self.vx(19, 'q ^ ((w&1)*32)', q=18)
        k.wait(vm=hy[0])
        self.barrier()
        self.stamp('staged')
        KF = 112
        hs = []
        for ks in range(4):
            for b in range(4):
                for kh in range(2):
                    h = self.dstr(v(KF + 16 * ks + 4 * b + 2 * kh, 2), 16 + b, 4096 * ks + 2048 * kh)
            hs.append(h)
        k.c('store offsets of the partial kv: [head][d 21][f 40] bf16')
        self.vx(20, '(l&15) + (w&1)*16 - 8')
        self.vx(21, 'sel(q<21, q*80 + (l>>4)*8, BIGR)', (22, 23, 42, 43), q=20)
        self.vx(22, 'sel(l<32, q, BIGR)', (20, 23, 42, 43), q=21)
        self.sx(T2, 'KP + (c*16 + r)*KPS + (w>>1)*1680')
        self.sx(sFL, 'sel(w==0, F_KV + (c*16 + r)*128, BIGR)')
        D = 24
        for ks in range(4):
            k.wait(lg=hs[ks])
            for ft in range(3):
                e('%s %s, %s, %s, %s' % (M16, v(D + 4 * ft, 4), v(KF + 16 * ks + 4 * ft, 4),
                                       v(KF + 16 * ks + 12, 4), '0' if ks == 0 else v(D + 4 * ft, 4)))
        self.pack(36, D, 6)
        for ft in range(3):
            self.st(v(36 + 2 * ft, 2), 21 if ft < 2 else 22, WS, T2, 32 * ft, n=2)
        self.stamp('kv stored')
        k.c('projection to q; relayout, the second GEMV and the publication of kv run inside it')
        self.sx(sDM, 'w*25600 + L_WO')
        self.sx(sDG, 'WOF + c2*102400 + w*25600')
        self.vx(252, '(l&15)*128 + c*2048 + F_KV', (16,))
        e('v_add_u32 v208, %d, v208' % L_RS)
        side = Side()

        def g_mid():
            k.wait(vm=hr[0])
            e('s_barrier')
            yield
            hs1 = []
            for ks in range(5):
                self.dstr(v(112 + 4 * ks, 2), 208, ks * 4096)
                hs1.append(self.dstr(v(114 + 4 * ks, 2), 208, ks * 4096 + 512))
                yield
            gv = self.g_gemv(208, L_J1B - L_RS, L_SILU2, 132, 44)
            for ks in range(5):
                next(gv)
                k.wait(lg=hs1[ks])
                self.st(v(112 + 4 * ks, 4), vL16, WS, U2)
                if ks < 4:
                    e('s_add_u32 %s, %s, %s' % (s(U2), s(U2), s(U3)))
                yield
            for _ in gv:
                yield
            self.poll_check(250, h_wo)
            for _ in range(self.o('midw', 8)):
                yield
            k.wait(vm=self.h_gemv)
            e('s_barrier')
            self.flag(sFL, 50)
            yield
            for _ in self.g_lin_dma(25):
                yield
        side.add(g_mid(), self.o('mid0', 2), self.o('mids', 2))
        items = []
        for ks in range(20):
            for t in range(3):
                items.append((vL16, L_Y + (3 * ks + t) * 1024,
                              [(v(QA + 12 * tok + 4 * t, 4), ks == 0, a(8 * ks + 4 * tok, 4), None) for tok in range(2)]))
        self.gemm(items, BUF, 8, 6, side, wgrp=2)
        self.stamp('pass b done')
        for u in range(12):
            e('v_permlane16_swap_b32 %s, %s' % (v(QA + u), v(QA + 12 + u)))
        mark = len(k.ins)
        self.softmax(QA, E, 152, TM)
        tail = k.ins[mark + self.o('kvp', 100):]
        del k.ins[mark + self.o('kvp', 100):]
        self.h_kvp = self.poll_issue(252)
        k.ins.extend(tail)
        self.stamp('q done')

    def attn_out(self):
        k = self.k
        e = k.e
        PHIQ, G, SUM = 152, 184, 124
        k.c('sum the 16 partial kv blocks of this head pair')
        self.vx(112, 'sel(tid<210, tid*16, BIGR)', (113, 114, 115, 116))
        self.sx(T4, 'KP + c*%d' % (16 * KPS))
        self.poll_check(252, self.h_kvp)
        self.stamp('kv seen')
        hs = []
        for r in range(16):
            hs.append(self.ld(v(G + 4 * r, 4), 112, WS, T4, KPS if r & 1 else 0, sc1=True))
            if r & 1 and r < 15:
                e('s_add_u32 %s, %s, %d' % (s(T4), s(T4), 2 * KPS))
        self.vx(113, 'tid*16 + L_KVT')
        e('s_mov_b32 %s, 0x00003f80\ns_mov_b32 %s, 0x3f800000' % (s(T5), s(T6)))
        k.c('operand addresses: row i -> (head, output index), masked lanes read zeros')
        self.vx(114, '((l>>3)&3)*4 + (l&3)', (115,))
        self.vx(117, 'sel(((l>>2)&1)==(l>>5), (u + (l>>5)*4)*80 + (l>>5)*1680 + L_KVT, L_KVZ)', (115, 116, 119, 120, 121), u=114)
        self.vx(118, 'sel(u==4, 20, u + ((l>>5)^1)*16)*80 + (l>>5)*1680 + L_KVT', (115, 116, 119, 120, 121), u=114)
        self.vx(115, 'u + (((l>>2)&1)^(l>>5))*8', (116, 119), u=114)
        self.vx(118, 'sel(p<5, q, L_KVZ)', (116, 119, 120, 121), q=118, p=115)
        k.c('store offsets of o')
        self.vx(119, '((l>>4)&1)*20480 + (l&15)*16', (120,))
        self.vx(121, 'q + (l>>5)*8', (120,), q=119)
        self.vx(120, 'q + (l>>5)*768', (116,), q=119)
        self.sx(T2, 'OF + (r*4 + w)*40960 + c*1280')
        self.sx(sFL, 'F_O + ((r*4 + w)*16 + c)*128')
        self.sx(sKQ, 'min(w*6, 17) + 32')
        self.sx(sW2, 'W2F + (c2*54 + w*8)*5120')
        self.sx(sW2b, 'W2F + (c2*54 + kq)*5120')
        e('v_mov_b32 v136, 0')
        self.vx(137, '(l&31)*4')
        e('s_barrier')
        self.dsw(137, v(136), L_KVZ, n=1)
        self.gw2 = self.g_w2()
        for r in range(16):
            k.wait(vm=hs[r])
            for i in range(4):
                for hh in range(2):
                    d = v(SUM + 2 * i + hh)
                    e('v_dot2_f32_bf16 %s, %s, %s, %s' % (d, v(G + 4 * r + i), s(T5 + hh), d if r else '0'))
            if r >= 16 - self.o('w2e', 6):
                next(self.gw2)
        self.pack(132, SUM, 4)
        self.dsw(113, v(132, 4))
        self.barrier()
        self.stamp('kv summed')
        hs = []
        for st in range(5):
            self.dsr(v(G + 8 * st, 4), 117, 16 * st)
            hs.append(self.dsr(v(G + 8 * st + 4, 4), 118, 16 * st))
        for st in range(5):
            k.wait(lg=hs[st])
            for ot in range(2):
                e('%s %s, %s, %s, %s' % (M32, v(16 + 16 * ot, 16), v(G + 8 * st + 4 * ot, 4),
                                       v(PHIQ + 4 * st, 4), v(16 + 16 * ot, 16) if st else '0'))
        e('v_add_f32 v36, 0x358637bd, v36')
        e('v_rcp_f32 v36, v36')
        for i in range(10):
            e('v_pk_mul_f32 %s, %s, v[36:37] op_sel_hi:[1,0]' % (v(16 + 2 * i, 2), v(16 + 2 * i, 2)))
        self.pack(48, 16, 10)
        self.st(v(48, 4), 120, WS, T2, 0)
        self.st(v(52, 4), 120, WS, T2, 256)
        self.h_ost = self.st(v(56, 2), 121, WS, T2, 512, n=2)

    def g_ring(self, groups):
        e = self.k.e
        for grp in groups:
            if grp < 10:
                slot, n = (16 * grp) % 144, 4
                e('s_add_u32 %s, %s, %d' % (s(sDG), s(sRA), 16384 * grp))
                e('s_add_u32 m0, %s, %d' % (s(U4), self.ring_addr(slot)))
            else:
                slot, n = 24 + 12 * (grp - 10), 3
                e('s_add_u32 %s, %s, %d' % (s(sDG), s(sRB), 2 * 88 * 1024 * (grp - 10)))
                e('s_add_u32 m0, %s, %d' % (s(U5), self.ring_addr(slot)))
            for j in range(n):
                self.hring[grp] = self.dma(vL16, WS, sDG, 1024 * j, sc1=True)
                yield

    @staticmethod
    def ring_addr(slot):
        return slot * 1024 if slot < 48 else 61440 + (slot - 48) * 1024

    def w2reg(self, n):
        if n < 24:
            return a(160 + 4 * n, 4)
        if n < 40:
            return v(192 + 4 * (n - 24), 4)
        return a(4 * (n - 40), 4)

    def g_w2(self):
        e = self.k.e
        self.w2n = 0
        for n in range(70):
            m, sb = (n, sW2) if n < 40 else (n - 40, sW2b)
            if n == 65:
                e('s_cmp_lt_u32 %s, 2' % s(sW))
                e('s_cselect_b32 %s, %s, %s' % (s(sW2b), s(sW2b), s(sBIG)))
            if m and m & 3 == 0:
                e('s_add_u32 %s, %s, 4096' % (s(sb), s(sb)))
            self.ld(self.w2reg(n), vL16, WS, sb, 1024 * (m & 3), sc1=True)
            self.w2n = n + 1
            yield

    def g_w2_until(self, n):
        while self.w2n < n:
            next(self.gw2)
            yield

    def p2(self):
        k = self.k
        e = k.e
        ACC, BUF = 16, 80
        k.c('addresses for the output projection and the streams behind it')
        self.coords(sR, sC, 16, self.map3)
        self.lane_rowseg(46, 47, 112)
        self.sx(sXOFF, '(r2*4 + w)*20480 + c2*160')
        self.sx(sAOF, 'OF + (r2*4 + w)*20480')
        self.vx(250, '(l&15)*128 + (r2*2 + (w>>1))*2048 + F_O', (112,))
        self.vx(112, 'min(l,19)*16')
        for kq in range(4):
            self.sx(PB + kq, 'w*2560 + c2*320 + %d' % (MODP + 2 * 2560 + 15360 * kq))
        k.wait(vm=self.h_ost)
        self.flag(sFL, 113)
        self.stamp('o flag')
        self.ld(v(36, 4), 46, XS, sXOFF, 0)
        self.ld(v(40, 4), 46, XS, sXOFF, 16)
        self.ld(v(44, 2), 47, XS, sXOFF, 0, n=2)
        k.c('gate / shift / scale vectors for this workgroup\'s 80 output columns -> LDS')

        def issue():
            for kq in range(4):
                h = self.ld(v(116 + 4 * kq, 4), 112, WS, PB + kq, 0, sc1=True)
            return h
        h_mv = issue()
        run(self.g_w2_until(self.o('w2f', 12)))
        h_poll = self.poll_issue(250)
        e('s_cmp_eq_u32 %s, 2' % s(sW))
        e('s_cselect_b32 %s, 1.0, 0' % s(T2))
        e('v_mov_b32 v114, %s' % s(T2))
        self.vx(113, 'q + w*320', q=112)
        self.sx(sCC, 'c*11>>2')
        self.sx(sRA, 'W13A + c*163840 + w*4096')
        self.sx(sRB, 'W13B + ((w>>1)*88 + cc*2 + (w&1)*3)*1024')
        self.sx(U4, 'w*4096')
        self.sx(U5, 'w*3072')
        e('v_add_u32 %s, %d, %s' % (v(vA0), L_WO, v(vL16)))
        e('v_add_u32 %s, %d, %s' % (v(vA1), L_WO + 65536, v(vL16)))
        self.mv_addr(46, 47, 137)
        self.spin(h_mv, lambda: self.tag_check(list(range(116, 132)), 136), issue)
        self.round_mod(132, 116, 114)
        self.dsw(113, v(132, 4), L_MV)
        self.unpack(48, 36, 10)
        self.poll_check(250, h_poll)
        self.stamp('o seen')
        h_a = {}

        def g_a():
            for ks in range(20):
                if ks and ks & 3 == 0:
                    e('s_add_u32 %s, %s, 4096' % (s(sAOF), s(sAOF)))
                h_a[ks] = self.ld(a(4 * ks, 4), vL16, WS, sAOF, 1024 * (ks & 3), sc1=True)
                yield
        ga = g_a()
        run(ga, self.o('pre2', 9))
        self.barrier()
        self.mv_read(112, 0, 46, 47)
        self.mv_read(132, 2, 46, 47)
        self.mv_read(152, 1, 46, 47)
        k.c('output projection')
        self.hring = {}
        side = Side()
        side.add(ga, 2, self.o('s2', 5))
        side.add(self.g_ring(range(3)), 60, 3)
        items = []
        for ks in range(20):
            for t in range(5):
                n = 5 * ks + t
                items.append((vA0 if n < 64 else vA1, (n % 64) * 1024,
                              [(v(ACC + 4 * t, 4), ks == 0, a(4 * ks, 4), (lambda kk=ks: h_a[kk]))]))
        self.gemm(items, BUF, 8, 6, side, wgrp=2)
        self.stamp('p2 done')
        k.c('x1 = x + ga * attn, partial row statistics over 80 columns')
        X_ = 48
        self.vx(176, '(l&15)*16')
        self.vx(178, 'q + (l>>4)*256', (177,), q=176)
        self.sx(T4, 'ST + (r2*4 + w)*2048')
        self.sx(T5, 'T4 + c2*256')
        for i in range(10):
            e('v_pk_fma_f32 %s, %s, %s, %s' % (v(X_ + 2 * i, 2), v(ACC + 2 * i, 2), v(112 + 2 * i, 2), v(X_ + 2 * i, 2)))
        self.pack(X1P, X_, 10)
        self.unpack(X_, X1P, 10)
        self.pksum(68, X_, 10)
        self.xsum(68, 70, (16, 32))
        e('v_mul_f32 v72, 0x3c4ccccd, v68')
        for i in range(10):
            e('v_pk_add_f32 %s, %s, v[72:73] op_sel_hi:[1,0] neg_lo:[0,1] neg_hi:[0,1]' % (v(16 + 2 * i, 2), v(X_ + 2 * i, 2)))
        e('v_pk_mul_f32 v[68:69], v[16:17], v[16:17]')
        for i in range(1, 10):
            e('v_pk_fma_f32 v[68:69], %s, %s, v[68:69]' % (v(16 + 2 * i, 2), v(16 + 2 * i, 2)))
        e('v_add_f32 v74, v68, v69')
        self.xsum(74, 70, (16, 32))
        e('v_mov_b32 v73, %s' % s(TAG))
        e('v_mov_b32 v75, %s' % s(TAG))
        e('s_mov_b64 exec, 0xffff')
        self.st('v[72:75]', 176, WS, T5)
        e('s_mov_b64 exec, -1')
        e('s_barrier')
        RA = self.o('ring_a', 2)
        run(self.g_ring(range(3, 3 + RA)))

        def issue_st():
            self.ld(v(16, 4), 178, WS, T4, 0, sc1=True)
            return self.ld(v(20, 4), 178, WS, T4, 1024, sc1=True)

        def check_st():
            e('v_xor_b32 v24, %s, v17' % s(TAG))
            for r in (19, 21, 23):
                e('v_bitop3_b32 v24, %s, %s, v24 bitop3:0xbe' % (v(r), s(TAG)))
            e('v_cmp_ne_u32 vcc, 0, v24')
        h = issue_st()
        self.vx(40, '(l>>5)*1280 + q + ((l>>4)&1)*768', (41,), q=176)
        self.vx(42, '(l>>5)*1280 + q + ((l>>4)&1)*8', (41,), q=176)
        self.sx(T2, 'H2F + (r2*4 + w)*20480 + c2*2560')
        self.sx(sFL, 'F_H2 + ((r2*4 + w)*8 + c2)*128')
        k.c('collect the eight partial statistics (each 8-byte half carries the launch tag)')
        self.spin(h, check_st, issue_st)
        self.stamp('stats seen')
        e('v_add_f32 v24, v16, v20')
        self.xsum(24, 26, (16, 32))
        e('v_mul_f32 v24, 0xbe000000, v24')
        e('v_add_f32 v16, v16, v24')
        e('v_add_f32 v20, v20, v24')
        e('v_mul_f32 v16, v16, v16')
        e('v_fmac_f32 v16, v20, v20')
        e('v_add_f32 v18, v18, v22')
        e('v_fmac_f32 v18, 0x42a00000, v16')
        self.xsum(18, 26, (16, 32))
        e('v_mov_b32 v19, 0x3727c5ac')
        e('v_fmac_f32 v19, 0x3acccccd, v18')
        e('v_rsq_f32 v18, v19')
        e('v_mul_f32 v24, v24, v18')
        for i in range(10):
            e('v_pk_fma_f32 %s, %s, v[18:19], v[24:25] op_sel_hi:[1,0,0]' % (v(X_ + 2 * i, 2), v(X_ + 2 * i, 2)))
        for i in range(10):
            e('v_pk_fma_f32 %s, %s, %s, %s' % (v(X_ + 2 * i, 2), v(X_ + 2 * i, 2), v(132 + 2 * i, 2), v(152 + 2 * i, 2)))
        self.pack(28, X_, 10)
        self.st(v(28, 4), 40, WS, T2, 0)
        self.st(v(32, 4), 40, WS, T2, 256)
        self.h_h2st = self.st(v(36, 2), 42, WS, T2, 512, n=2)

    def g_silu(self, acc, npairs, tm, ob, soff, out, packed=True):
        e = self.k.e
        for p in range(npairs):
            g, u = acc + 16 * p, acc + 16 * p + 8
            o = ob + 4 * (p & 1)
            if packed:
                for i in range(4):
                    e('v_pk_mul_f32 %s, %s, %s neg_lo:[1,0] neg_hi:[1,0]' % (v(tm + 2 * i, 2), v(g + 2 * i, 2), s(LOG2E, 2)))
                    yield
            else:
                for i in range(8):
                    e('v_mul_f32 %s, 0xbfb8aa3b, %s' % (v(tm + i), v(g + i)))
                    yield
            for i in range(8):
                e('v_exp_f32 %s, %s' % (v(tm + i), v(tm + i)))
                yield
            if packed:
                for i in range(4):
                    e('v_pk_add_f32 %s, %s, 1.0 op_sel_hi:[1,0]' % (v(tm + 2 * i, 2), v(tm + 2 * i, 2)))
                    yield
            else:
                for i in range(8):
                    e('v_add_f32 %s, 1.0, %s' % (v(tm + i), v(tm + i)))
                    yield
            for i in range(8):
                e('v_rcp_f32 %s, %s' % (v(tm + i), v(tm + i)))
                yield
            for x in (tm, u):
                if packed:
                    for i in range(4):
                        e('v_pk_mul_f32 %s, %s, %s' % (v(g + 2 * i, 2), v(g + 2 * i, 2), v(x + 2 * i, 2)))
                        yield
                else:
                    for i in range(8):
                        e('v_mul_f32 %s, %s, %s' % (v(g + i), v(g + i), v(x + i)))
                        yield
            for i in range(4):
                e('v_cvt_pk_bf16_f32 %s, %s, %s' % (v(o + i), v(g + 2 * i), v(g + 2 * i + 1)))
                yield
            e('v_permlane16_swap_b32 %s, %s' % (v(o), v(o + 2)))
            yield
            e('v_permlane16_swap_b32 %s, %s' % (v(o + 1), v(o + 3)))
            yield
            out[0] = self.st(v(o, 4), 176, WS, soff, 512 * p)
            yield

    def p3(self):
        k = self.k
        e = k.e
        A1, A2, BUF = 16, 80, 128
        RA, RB = self.o('ring_a', 2), self.o('ring_b', 7)
        self.sx(sAOF, 'H2F + (r*4 + w)*40960')
        self.sx(sAOF2, 'aof + 20480')
        self.vx(178, '(l&15)*128 + (r*4 + w)*2048 + F_H2', (179,))
        e('v_add_u32 %s, 61440, %s' % (v(vA0), v(vL16)))
        e('v_add_u32 %s, %d, %s' % (v(vA1), 61440 + 65536, v(vL16)))
        k.wait(vm=self.h_h2st)
        self.flag(sFL, 16)
        self.stamp('h2 flag')
        run(self.g_ring(range(3 + RA, RB)))
        h_poll = self.poll_issue(178)
        k.c('hand-over addresses for hh')
        self.vx(176, '((l>>4)&1)*55296 + (l&15)*16 + (l>>5)*256', (177,))
        self.sx(U0, 'HHF + (r*4 + w)*110592 + c*2048')
        self.sx(U1, 'HHF + (r*4 + w)*110592 + cc*512 + 32768')
        self.sx(T2, '((r*2 + (w>>1))*32 + c*2 + (w&1))*128')
        self.sx(sFL, 'T2 + F_HH1')
        self.sx(sFL2, 'T2 + F_HH2')
        self.vx(180, '(l&7)*128 + r2*4096 + w*1024 + F_HH1', (181,))
        self.vx(182, '(l&31)*128 + r2*4096 + F_HH2', (183,))
        for jj in range(4):
            self.sx(T2, '(r2*4 + ((w + %d)&3))*55296 + HHF' % jj)
            self.sx(PB + jj, 'T2 + w*8192')
            self.sx(PB + 4 + jj, 'T2 + kq*1024')
        self.poll_check(178, h_poll)
        self.stamp('h2 seen')
        h_a = {}
        ga = self.g_act_loads(h_a)
        run(ga, 2 * self.o('pre3', 4))
        e('s_barrier')
        self.stamp('p3 start')

        def lds(slot):
            if slot < 48:
                return vL16, slot * 1024
            if slot < 112:
                return vA0, (slot - 48) * 1024
            return vA1, (slot - 112) * 1024

        def g_sync(groups, wait=None):
            if wait is not None:
                k.wait(vm=self.hring[wait])
            e('s_barrier')
            yield
            for _ in self.g_ring(groups):
                yield
        k.c('gate / up projection, first pass: four tile pairs')
        side = Side()
        side.add(ga, 2, 8)
        side.add(self.g_ring(range(RB, 9)), 6, 8)
        for ks, groups, wait in ((5, (9, 10), None), (9, (11, 12), 8), (13, (13, 14), None), (16, (), 12),
                                 (17, (15,), None)):
            side.add(g_sync(groups, wait), 16 * ks + 15, 8)
        side.add(self.g_w2_until(self.o('w2a', 24)), 16 * 16 + 4, 5)
        items = []
        for ks in range(20):
            for t in range(8):
                base, off = lds((8 * ks + t) % 144)
                items.append((base, off, [(v(A1 + 8 * t + 4 * tok, 4), ks == 0, a(8 * ks + 4 * tok, 4),
                                           (lambda kk=ks, tt=tok: h_a[(kk, tt)])) for tok in range(2)]))
        assert RB >= 6
        self.gemm(items, BUF, 8, 6, side, wgrp=2)
        self.stamp('p3 mid')
        k.c('second pass: three tile pairs, with the first epilogue inside it')
        side = Side()
        hst = [0]
        gs = self.g_silu(A1, 4, 160, 168, U0, hst, packed=False)
        side.add(gs, 4, 1)
        side.add(gs, 5, self.o('silu2', 4))

        def g_rest():
            for _ in self.g_ring((16, 17, 18, 19)):
                yield
            for _ in self.g_w2_until(self.o('w2b', 58)):
                yield
        side.add(g_rest(), 1, self.o('rests', 4))
        side.add(g_sync((), 15), 12 * 4 + 11, 1)
        side.add(g_sync((), 19), 12 * 10 + 11, 1)

        def pub():
            k.wait(vm=hst[0])
            self.flag(sFL, 177)
        side.at(self.o('pub1', 215), pub)
        items = []
        for ks in range(20):
            for t in range(6):
                base, off = lds(24 + 6 * ks + t)
                items.append((base, off, [(v(A2 + 8 * t + 4 * tok, 4), ks == 0, a(8 * ks + 4 * tok, 4), None)
                                          for tok in range(2)]))
        self.gemm(items, BUF, 8, 6, side, wgrp=2)
        self.stamp('p3 done')

    def p4(self):
        k = self.k
        e = k.e
        ACC, AB, NB = 80, 16, 16
        order = [(kk, jj) for kk in range(12) for jj in range(4)]
        order += [(kk, jj) for jj in (1, 2, 3, 0) for kk in (12, 13)]
        hs = {}
        st = {'next': 0, 'late': False}

        def issue():
            i = st['next']
            if i >= 56:
                return False
            kk, jj = order[i]
            if kk >= 8 and not st['late']:
                return False
            sb, m = (PB + jj, kk) if kk < 8 else (PB + 4 + jj, kk - 8)
            if m == 4:
                e('s_add_u32 %s, %s, 4096' % (s(sb), s(sb)))
            if kk == 13:
                e('s_cmp_lt_u32 %s, 2' % s(sW))
                e('s_cselect_b32 %s, %s, %s' % (s(sb), s(sb), s(sBIG)))
            hs[i] = self.ld(v(AB + 4 * (i % NB), 4), vL16, WS, sb, 1024 * (m & 3), sc1=True)
            st['next'] += 1
            return True
        k.c('second epilogue; the first operands of the down projection are requested inside it')
        PRE = self.o('pre4', 10)
        hst2 = [0]
        ge = self.g_silu(80, 3, 160, 168, U1, hst2)
        run(ge, self.o('e2a', 30))
        h_p1 = self.poll_issue(180)
        run(ge, self.o('e2b', 40))
        self.poll_check(180, h_p1)
        self.stamp('hh1 seen')
        for i, _ in enumerate(ge):
            if i % 4 == 0 and st['next'] < PRE:
                issue()
        while st['next'] < PRE:
            issue()
        self.stamp('hh stored')
        k.c('down projection: each wave owns a quarter of K for all 64 x 80 outputs')
        for jj in range(1, 4):
            self.vx(164 + jj, 'l16 + ((w + %d)&3)*15360 + %d' % (jj, L_RED + (jj - 1) * 5120))
        self.mv_addr(162, 163, 164)
        self.vx(164, 'l16 + w*15360 + L_RED')
        self.lane_rowseg(160, 161, 168)
        gw = self.g_w2_until(70)
        h_p2 = None
        pend = []
        for i, (kk, jj) in enumerate(order):
            if i == self.o('chk2', 24):
                self.poll_check(182, h_p2)
                st['late'] = True
                e('s_barrier')
                while st['next'] < i + PRE and issue():
                    pass
            k.wait(vm=hs[i])
            for t in range(5):
                acc = v(ACC + 20 * jj + 4 * t, 4)
                e('%s %s, %s, %s, %s' % (M16, acc, self.w2reg(5 * kk + t), v(AB + 4 * (i % NB), 4), acc if kk else '0'))
                if t == 0:
                    if i == self.o('pub2', 3):
                        k.wait(vm=hst2[0])
                        self.flag(sFL2, 177)
                    if i == self.o('iss2', 20):
                        h_p2 = self.poll_issue(182)
                    if st['next'] < i + 1 + PRE:
                        issue()
                if t == 2 and i >= self.o('w2c', 4):
                    next(gw, None)
                if pend and (i, t) >= pend[0][0]:
                    _, pj, pt = pend.pop(0)
                    self.dsw(164 + pj, v(ACC + 20 * pj + 4 * pt, 4), 1024 * pt)
            if i == 40:
                self.mv_read(192, 3, 162, 163)
            if kk == 13 and jj:
                pend += [((i + 1 + (t + 2) // 5, (t + 2) % 5), jj, t) for t in range(5)]
        assert self.w2n == 70 and not pend
        self.stamp('p4 done')
        k.c('reduce the four K quarters through LDS: wave w keeps token block w')
        self.unpack(212, X1P, 10)
        self.barrier()
        hs = []
        for jj in range(3):
            for t in range(5):
                h = self.dsr(v(16 + 20 * jj + 4 * t, 4), 164, 5120 * jj + 1024 * t)
            hs.append(h)
        for jj in range(3):
            k.wait(lg=hs[jj])
            for i in range(10):
                e('v_pk_add_f32 %s, %s, %s' % (v(ACC + 2 * i, 2), v(ACC + 2 * i, 2), v(16 + 20 * jj + 2 * i, 2)))
        for i in range(10):
            e('v_pk_fma_f32 %s, %s, %s, %s' % (v(ACC + 2 * i, 2), v(ACC + 2 * i, 2), v(192 + 2 * i, 2), v(212 + 2 * i, 2)))
        self.pack(100, ACC, 10)
        self.st(v(100, 4), 160, OUTS, sXOFF, 0, sc1=False)
        self.st(v(104, 4), 160, OUTS, sXOFF, 16, sc1=False)
        self.st(v(108, 2), 161, OUTS, sXOFF, 0, sc1=False, n=2)

    def epilogue(self):
        k = self.k
        e = k.e
        k.c('workgroup 0 records the launch tag for the next launch')
        self.sx(T2, 'sel(b + w == 0, EPOCH, BIGR)')
        self.flag(T2, 112)
        if self.ts:
            self.stamp('out issued')
            k.wait_all()
            self.stamp('end')
            self.sx(T2, '(b*4 + w)*256 + TSB')
            e('v_lshlrev_b32 v16, 2, %s' % v(vL))
            self.st(v(vTS), 16, WS, T2, 0, n=1)
        if self.probe:
            k.wait_all()
            self.stamp('end')
            e('s_memrealtime %s' % s(T0, 2))
            e('s_waitcnt lgkmcnt(0)')
            k.label('L_probe')
            e('s_memrealtime %s' % s(T2, 2))
            e('s_waitcnt lgkmcnt(0)')
            e('s_sub_u32 %s, %s, %s' % (s(T2), s(T2), s(T0)))
            e('s_cmp_lt_u32 %s, %s' % (s(T2), s(sTS + 1)))
            e('s_cbranch_scc1 L_probe')
        k.label('L_end')
        e('s_endpgm')

    def build(self):
        steps = [self.p0, self.p1, self.attn_out, self.p2, self.p3, self.p4]
        for i, f in enumerate(steps):
            if i > self.stop:
                break
            f()
        if self.stop < len(steps) - 1:
            self.k.wait_all(force=True)
        self.epilogue()
        body, nins, nops = self.k.text()
        head = open('cdna_kernels/%s.s.ref' % NAME).read().split('; Override launch')[0]
        src = head
        src += '; One persistent launch, 256 workgroups (one per CU); phases hand data over through d_ws with launch-tagged flags.\n'
        src += '; @launch grid=(256,1,1) block=(256,1,1) lds=%d\n' % LDS_BYTES
        src += '.amdgcn_target "amdgcn-amd-amdhsa--gfx950"\n.text\n.globl %s\n.p2align 8\n.type %s,@function\n%s:\n' % (KN, KN, KN)
        src += body
        src += 'L_code_end:\n'
        src += '''.section .rodata,"a"
.p2align 6
.amdhsa_kernel %s
  .amdhsa_next_free_vgpr 512
  .amdhsa_next_free_sgpr 102
  .amdhsa_accum_offset 256
  .amdhsa_group_segment_fixed_size 0
  .amdhsa_kernarg_size 104
  .amdhsa_user_sgpr_count 2
  .amdhsa_user_sgpr_kernarg_segment_ptr 1
  .amdhsa_system_sgpr_workgroup_id_x 1
  .amdhsa_float_denorm_mode_32 3
.end_amdhsa_kernel
''' % KN
        return src, nins, nops


if __name__ == '__main__':
    import argparse
    ap = argparse.ArgumentParser()
    ap.add_argument('-o', default='k.s')
    ap.add_argument('--stop', type=int, default=99)
    ap.add_argument('--ts', action='store_true')
    ap.add_argument('--map', default='8,8,4')
    ap.add_argument('--opt', default='')
    ap.add_argument('--probe', default='')
    args = ap.parse_args()
    opt = {kv.split('=')[0]: int(kv.split('=')[1]) for kv in args.opt.split(',') if kv}
    g = Gen(args.stop, args.ts, tuple(int(x) for x in args.map.split(',')), opt,
            (args.probe.split(':')[0], int(args.probe.split(':')[1])) if args.probe else None)
    src, nins, nops = g.build()
    open(args.o, 'w').write(src)
    if args.ts:
        open(args.o + '.ts', 'w').write('\n'.join(g.tsnames))
    print('instructions', nins, 'hazard nops', nops, 'bytes', len(src))
```
